```python
import torch

def _softmax(x, axis=-1):
    return torch.softmax(x, dim=axis)
def _gelu(x):
    return torch.nn.functional.gelu(x, approximate="tanh")
def _silu(x):
    return torch.nn.functional.silu(x)
def _sigmoid(x):
    return torch.sigmoid(x)
def _layernorm(x, axis=-1, eps=1e-5):
    m = x.mean(dim=axis, keepdim=True)
    v = x.var(dim=axis, keepdim=True, unbiased=False)
    return (x - m) / torch.sqrt(v + eps)
def _scatter_add(tgt, idx, src, axis=0):
    return tgt.clone().index_add_(axis, idx, src)
def _segment_sum(src, seg, n):
    out = torch.zeros((n,) + src.shape[1:], dtype=src.dtype)
    return out.index_add_(0, seg, src)
def _pad(x, pw):
    flat = tuple(v for pair in reversed(pw) for v in pair)
    return torch.nn.functional.pad(x, flat)

kernel_name = 'recurrent_scan__spectral_gfnet__glu_gated_swiglu__prompt'

def setup_inputs():

    _w = (lambda a: (lambda t: t.to(torch.bfloat16) if t.is_floating_point() else t)(torch.as_tensor(a)))
    def _A_setup():
        B, S, D = 1, 2048, 448
        Df = D // 2 + 1
        return {
            "x": _w((lambda *s: torch.randn(*s, dtype=torch.bfloat16) * 0.2)(B, S, D)),
            "w_r": _w((lambda *s: torch.randn(*s, dtype=torch.bfloat16) * 1.6)(S, Df) * 0.02),
            "w_i": _w((lambda *s: torch.randn(*s, dtype=torch.bfloat16) * 1.6)(S, Df) * 0.02),
        }
    _A_in = _A_setup()

    def _B_setup():
        B, S, D, F = 1, 2048, 448, 1792
        return {
            "x": _w((lambda *s: torch.randn(*s, dtype=torch.bfloat16) * 0.2)(B, S, D)),
            "w1": _w((lambda *s: torch.randn(*s, dtype=torch.bfloat16) * 0.8)(D, F) * (2.0 / D) ** 0.5),
            "w3": _w((lambda *s: torch.randn(*s, dtype=torch.bfloat16) * 0.8)(D, F) * (2.0 / D) ** 0.5),
            "w2": _w((lambda *s: torch.randn(*s, dtype=torch.bfloat16) * 0.8)(F, D) * (2.0 / F) ** 0.5),
        }
    _B_in = _B_setup()

    return {
        "A_x": _A_in["x"],
        "A_w_r": _A_in["w_r"],
        "A_w_i": _A_in["w_i"],
        "B_x": _B_in["x"],
        "B_w1": _B_in["w1"],
        "B_w3": _B_in["w3"],
        "B_w2": _B_in["w2"],
    }

def reference(A_x, A_w_r, A_w_i, B_x, B_w1, B_w3, B_w2):
    def _A_ref(x, w_r, w_i):
        B, S, D = x.shape
        X = (lambda x, axes=(-2,-1): torch.fft.rfft2(x.float(), dim=axes))(x, axes=(-2, -1))
        W = w_r + 1j * w_i
        X = X * W
        y = (lambda x, s, axes=(-2,-1): torch.fft.irfft2(x, s=s, dim=axes).to(torch.bfloat16))(X, (S, D), axes=(-2, -1))
        return y

    def _B_ref(x, w1, w3, w2):
        gate = torch.einsum("bsd,df->bsf", x, w1)
        up = torch.einsum("bsd,df->bsf", x, w3)
        h = _silu(gate) * up
        out = torch.einsum("bsf,fd->bsd", h, w2)
        return out

    x = A_x
    xn = _layernorm(x, axis=-1)
    s = _A_ref(xn, A_w_r, A_w_i)
    g = _silu(_B_ref(xn, B_w1, B_w3, B_w2))
    return x + s * g
```

```python
import re
REG_RE = re.compile(r'(?<![\w.])([vas])\[(\d+):(\d+)\]|(?<![\w.])([vas])(\d+)(?![\w\[])|(?<![\w.])(vcc|exec|m0|scc)(?:_lo|_hi)?(?![\w])')
TRANS = ('v_exp_f32', 'v_log_f32', 'v_rcp_f32', 'v_rsq_f32', 'v_sqrt_f32', 'v_sin_f32', 'v_cos_f32', 'v_rcp_iflag_f32')

def regs_of(text):
    out = []
    for m in REG_RE.finditer(text):
        if m.group(1):
            out.append([(m.group(1), i) for i in range(int(m.group(2)), int(m.group(3)) + 1)])
        elif m.group(4):
            out.append([(m.group(4), int(m.group(5)))])
        else:
            out.append([(m.group(6), 0)])
    return out

class I:
    __slots__ = ('text', 'tag', 'op', 'kind', 'defs', 'uses', 'w', 'mf', 'note')
    def __init__(self, text, tag=None):
        self.text = text.strip(); self.tag = tag; self.note = None
        parts = self.text.split(None, 1)
        self.op = op = parts[0]
        rest = parts[1] if len(parts) > 1 else ''
        ops = [x.strip() for x in rest.split(',')] if rest else []
        R = [sum(regs_of(o.split(' ')[0] if not o.startswith(('-', 'abs', '|')) else o), []) for o in ops]
        flat = lambda L: set(sum(L, []))
        self.defs = set(); self.uses = set(); self.mf = None; self.w = 1
        if op.startswith('v_mfma'):
            self.kind = 'mfma'; self.defs = set(R[0]); self.uses = flat(R[1:])
            passes = 8 if '32x32' in op else (4 if '16x16' in op else 2)
            self.mf = dict(passes=passes, D=tuple(R[0]), A=set(R[1]), B=set(R[2]), C=tuple(R[3]))
            self.w = 2
        elif op.startswith('ds_read'):
            self.kind = 'ds'; self.defs = set(R[0]); self.uses = flat(R[1:])
        elif op.startswith('ds_write'):
            self.kind = 'ds'; self.uses = flat(R)
        elif op.startswith('buffer_load'):
            self.kind = 'vm'
            if re.search(r'\blds\b', rest):
                self.uses = flat(R) | {('m0', 0)}
            else:
                self.defs = set(R[0]); self.uses = flat(R[1:])
                if 'd16' in op: self.uses |= self.defs
        elif op.startswith(('buffer_store', 'buffer_atomic')):
            self.kind = 'vm'; self.uses = flat(R)
        elif op.startswith('v_'):
            self.kind = 'valu'
            base = op.replace('_e32', '').replace('_e64', '')
            self.defs = set(R[0]); self.uses = flat(R[1:])
            if base.startswith('v_cmp'):
                pass
            if base.startswith('v_permlane') and 'swap' in base:
                self.defs = flat(R); self.uses = flat(R)
            if base.startswith(('v_fmac', 'v_dot2c', 'v_writelane')):
                self.uses |= self.defs
            if base.startswith(('v_addc_co', 'v_add_co', 'v_sub_co', 'v_subb_co')):
                self.defs |= set(R[1]); self.uses = flat(R[2:])
            if base in TRANS: self.w = 2
        elif op in ('s_waitcnt', 's_barrier', 's_nop', 's_endpgm', 's_sleep', 's_setprio') or op.startswith(('s_branch', 's_cbranch')):
            self.kind = 'ctl'
            if op.startswith('s_cbranch_vcc'): self.uses = {('vcc', 0)}
        elif op.startswith(('s_load', 's_memtime', 's_memrealtime')):
            self.kind = 'smem'; self.defs = set(R[0]); self.uses = flat(R[1:])
        elif op.startswith('s_'):
            self.kind = 'salu'
            if op.startswith('s_cmp'):
                self.uses = flat(R)
            else:
                self.defs = set(R[0]); self.uses = flat(R[1:])
                if 'saveexec' in op: self.defs |= {('exec', 0)}
        else:
            raise ValueError('unknown instruction: ' + text)
    def is_trans(self):
        return self.op.replace('_e32', '').replace('_e64', '') in TRANS

class WaitVM:
    def __init__(self, tag): self.tag = tag; self.w = 1
class WaitLG:
    def __init__(self, tag): self.tag = tag; self.w = 1
class Raw:
    def __init__(self, text, sync=False): self.text = text; self.sync = sync; self.w = 0

def ins(x):
    if isinstance(x, str): return I(x)
    return x

class Prog:
    def __init__(self): self.items = []
    def e(self, text, tag=None):
        for line in text.strip().split('\n'):
            line = line.split(';')[0].strip()
            if line: self.items.append(I(line, tag))
        return self
    def add(self, items):
        for x in items:
            if isinstance(x, (list, tuple)): self.add(x)
            else: self.items.append(ins(x))
        return self
    def raw(self, text, sync=False): self.items.append(Raw(text, sync)); return self
    def waitvm(self, tag): self.items.append(WaitVM(tag)); return self
    def waitlg(self, tag): self.items.append(WaitLG(tag)); return self

    def finalize(self, align8=False):
        out = []
        vm = []; lg = []
        hist = []
        pos = [0]
        stats = dict(nops=0, waits=0, maxvm=0, n=0)
        def emit_text(t, states=1):
            out.append('    ' + t); pos[0] += states
        def do_wait(nvm=None, nlg=None):
            parts = []
            if nvm is not None:
                c = min(nvm, 63); parts.append(f'vmcnt({c})'); del vm[:len(vm) - c]
            if nlg is not None:
                c = min(nlg, 15); parts.append(f'lgkmcnt({c})'); del lg[:len(lg) - c]
            emit_text('s_waitcnt ' + ' '.join(parts)); stats['waits'] += 1
        def need(lst, regs):
            n = None
            for idx, (tag, defs) in enumerate(lst):
                if defs & regs: n = len(lst) - 1 - idx
            return n
        for it in self.items:
            if isinstance(it, Raw):
                out.append(it.text)
                if it.sync: vm.clear(); lg.clear(); hist.clear()
                continue
            if isinstance(it, (WaitVM, WaitLG)):
                lst = vm if isinstance(it, WaitVM) else lg
                tags = it.tag if isinstance(it.tag, (list, tuple, set)) else [it.tag]
                n = None
                for idx, (tag, defs) in enumerate(lst):
                    if tag in tags or it.tag == '*': n = len(lst) - 1 - idx
                if n is not None:
                    if lst is vm: do_wait(nvm=n)
                    else: do_wait(nlg=n)
                continue
            x = it
            if x.op == 's_waitcnt':
                m = re.search(r'vmcnt\((\d+)\)', x.text)
                if m: del vm[:max(0, len(vm) - int(m.group(1)))]
                m = re.search(r'lgkmcnt\((\d+)\)', x.text)
                if m: del lg[:max(0, len(lg) - int(m.group(1)))]
                emit_text(x.text); continue
            touched = x.uses | x.defs
            nv = need(vm, touched); nl = need(lg, touched)
            if nl is not None and any(t == '__smem' for t, d in lg): nl = 0
            if nv is not None or nl is not None: do_wait(nv, nl)
            req = 0
            for (p, ppos) in hist:
                dist = pos[0] - ppos - 1
                r = hazard(p, x)
                if r > dist: req = max(req, r - dist)
            while req > 0:
                k = min(req, 16); emit_text(f's_nop {k-1}', k); req -= k; stats['nops'] += 1
            if x.op == 's_nop':
                emit_text(x.text, int(x.text.split()[1]) + 1)
            else:
                hist.append((x, pos[0])); emit_text(x.text)
            stats['n'] += 1
            while hist and pos[0] - hist[0][1] > 24: hist.pop(0)
            if x.kind == 'vm':
                vm.append((x.tag, x.defs)); stats['maxvm'] = max(stats['maxvm'], len(vm))
                assert len(vm) <= 63, 'vmcnt overflow at ' + x.text
            elif x.kind == 'ds': lg.append((x.tag, x.defs))
            elif x.kind == 'smem': lg.append(('__smem', x.defs)); lg.append(('__smem', x.defs))
        self.stats = stats
        return '\n'.join(out) + '\n'

def isv(regs): return {r for r in regs if r[0] in 'va'}
def iss(regs): return {r for r in regs if r[0] == 's' or r[0] == 'vcc'}

def hazard(p, x):
    r = 0
    if p.kind == 'valu':
        pv = isv(p.defs); ps = iss(p.defs)
        if x.kind == 'mfma' and pv & x.uses: r = max(r, 2)
        if x.kind == 'valu':
            if x.op.startswith('v_permlane') and pv & x.uses: r = max(r, 2)
            if 'dpp' in x.text and pv & x.uses: r = max(r, 2)
            if x.op.startswith(('v_readfirstlane', 'v_readlane')) and pv & x.uses: r = max(r, 1)
            if p.is_trans() and pv & x.uses: r = max(r, 1)
            if ps & x.uses: r = max(r, 4 if x.op.startswith(('v_readlane', 'v_writelane')) else 2)
            if 'sdwa' in p.text and pv & (x.uses | x.defs): r = max(r, 1)
        if x.kind == 'vm' and ps & x.uses: r = max(r, 5)
        if x.kind in ('salu', 'ctl', 'smem') and ps & x.uses: r = max(r, 1)
    elif p.kind == 'mfma':
        D = set(p.mf['D']); n = p.mf['passes']
        long_ = {2: 5, 4: 8, 8: 12}[n]
        if x.kind == 'mfma':
            if D & (x.mf['A'] | x.mf['B']): r = max(r, long_)
            if D & set(x.mf['C']):
                if x.mf['C'] == p.mf['D'] and x.mf['passes'] == n: r = max(r, 2 if n == 2 else 0)
                else: r = max(r, n + 2)
            elif D & x.defs: r = max(r, n + 2)
        elif x.kind in ('valu', 'vm', 'ds'):
            if D & (x.uses | x.defs): r = max(r, long_)
            if x.kind == 'valu' and set(p.mf['C']) & x.defs: r = max(r, n - 1)
    elif p.kind == 'salu':
        if ('m0', 0) in p.defs and ('m0', 0) in x.uses: r = max(r, 1)
    elif p.kind == 'vm':
        if p.op.startswith('buffer_store') and ('x4' in p.op or 'x3' in p.op):
            data = set(regs_of(p.text.split(None, 1)[1].split(',')[0])[0])
            if data & x.defs: r = max(r, 2)
    return r

def flat_items(item):
    if isinstance(item, (list, tuple)):
        o = []
        for y in item: o += flat_items(y)
        return o
    return [ins(item)]

def weave(spine, streams, cap=5, report=None):
    n = len(spine)
    streams = [[(a, b, flat_items(c)) for a, b, c in s] for s in streams]
    for s in streams:
        for k in range(len(s) - 2, -1, -1):
            if s[k][1] > s[k + 1][1]: s[k] = (s[k][0], s[k + 1][1], s[k][2])
        for k in range(1, len(s)):
            if s[k][0] < s[k - 1][0]: s[k] = (s[k - 1][0], s[k][1], s[k][2])
        for a, b, c in s: assert a <= b, ('earliest > deadline', a, b, c[0].text if hasattr(c[0], 'text') else c[0])
    heads = [0] * len(streams)
    out = []; use = []
    import math
    carry = 0.0
    for g in range(-1, n):
        if g >= 0: out.append(ins(spine[g]))
        byd = {}
        for si, s in enumerate(streams):
            for k in range(heads[si], len(s)):
                byd[s[k][1]] = byd.get(s[k][1], 0) + sum(y.w for y in s[k][2])
        rate = 0; acc = 0
        for d in sorted(byd):
            acc += byd[d]
            if d >= g: rate = max(rate, acc / (d - g + 1))
        capg = max(cap, rate + carry)
        load = 0
        while True:
            best = None
            for si, s in enumerate(streams):
                if heads[si] < len(s):
                    a, b, c = s[heads[si]]
                    if a <= g:
                        key = (b, si)
                        if best is None or key < best[0]: best = (key, si)
            if best is None: break
            si = best[1]; a, b, c = streams[si][heads[si]]
            w = sum(y.w for y in c)
            if b > g and (g < 0 or load + w > capg): break
            out += c; load += w; heads[si] += 1
        carry = min(max(capg - load, 0), 0.99) if rate > cap else 0.0
        use.append(load)
    for si, s in enumerate(streams):
        assert heads[si] == len(s), ('unplaced items', si, s[heads[si]][1], n)
    if report is not None: report.append(use)
    return out
```

```python
import sys, math
import numpy as np
from asmlib import *

NAME = "recurrent_scan__spectral_gfnet__glu_gated_swiglu__prompt"
NWG = 224
HBUF = 0; YBUF = 0x700000; TBUF = 0x8C0000; FLG = 0xA80000; STAMP = 0xA90000; WS_SIZE = 0xB00000
FT = 0; IFT = 401408; CT = 802816; DP = 819200; TAB_SIZE = 821248
SLOT = 16384
X_, W1_, W3_, W2_, WR_, WI_, OUT_, WS_, TAB_, DBG_ = [f"s[{8+4*i}:{11+4*i}]" for i in range(10)]
sW, sI, sJ, sP, sK, sT, sE, sN2 = 's48', 's49', 's50', 's51', 's52', 's53', 's54', 's55'
sMASK, sONES = 's56', 's57'
sW4K = 's58'
sA, sB, sC, sD = 's60', 's61', 's62', 's63'
sDB0, sDB1 = 's64', 's65'
sH0, sH1 = 's66', 's67'
sW2A, sW2B = 's68', 's69'
sNONCE = 's70'
def vr(a, n): return f"v[{a}:{a+n-1}]"
def ar(a, n): return f"a[{a}:{a+n-1}]"
XF = 32
ACC = [144 + 16 * i for i in range(6)]
ABUF = 224
L16 = 'v1'

def bfbits(x):
    u = int(np.float32(x).view(np.uint32))
    return ((u + 0x7FFF + ((u >> 16) & 1)) >> 16) & 0xFFFF
def f32bits(x): return int(np.float32(x).view(np.uint32))
def cosr(i, n):
    i %= n
    if 2 * i > n: i = n - i
    if 4 * i == n: return 0.0
    if 4 * i > n: return -math.cos(2 * math.pi * (n - 2 * i) / (2 * n))
    return math.cos(2 * math.pi * i / n)
PAIRS = [(0, 16)] + [(a, 32 - a) for a in range(1, 16)]

def tables():
    s = '.p2align 8\n'
    for i in range(448):
        s += f".set ct{i}, {bfbits(cosr(i, 448)):#x}\n"
    s += ".set ct448, 0x3f00\n.set ct449, 0xbf00\n.set ct450, 0\n"
    md = lambda x: f"%(({x})-(({x})/448)*448)"
    s += r"""
.altmacro
.macro E8 a,b,c,d,e,f,g,h
.short ct\a,ct\b,ct\c,ct\d,ct\e,ct\f,ct\g,ct\h
.endm
.macro M8 p,k
E8 """ + ",".join(md(f"\\p+{i}*\\k") for i in range(8)) + r"""
.endm
.macro N8 p,k
E8 """ + ",".join(md(f"\\p+{i}*\\k") for i in range(4)) + "," + ",".join(md(f"\\p+{i}*\\k+112") for i in range(4)) + r"""
.endm
.macro L8 p,k
E8 """ + ",".join(md(f"\\p+{i}*\\k") for i in range(3)) + r",%(448+\k-(\k/2)*2)," + ",".join(md(f"\\p+{i}*\\k+112") for i in range(3)) + r""",450
.endm
TABS:
.set tj, 0
.rept 14
.set ts, 0
.rept 28
.set tl, 0
.rept 64
.set tk, 16*tj+1+(tl&15)
M8 %(tk*(16*ts+8*(tl>>5))+112*((tl>>4)&1)), %(tk)
.set tl, tl+1
.endr
.set ts, ts+1
.endr
.set tj, tj+1
.endr
.set tj, 0
.rept 14
.set ts, 0
.rept 28
.set tl, 0
.rept 64
.set tk, 32*tj+(tl&31)
.if (ts==27)&&(tl>=32)
L8 %(tk*(8*ts+1+4*(tl>>5))), %(tk)
.else
N8 %(tk*(8*ts+1+4*(tl>>5))), %(tk)
.endif
.set tl, tl+1
.endr
.set ts, ts+1
.endr
.set tj, tj+1
.endr
.noaltmacro
"""
    def dwords(vals):
        o = ''
        w = [vals[i] | (vals[i + 1] << 16) for i in range(0, len(vals), 2)]
        for i in range(0, len(w), 8):
            o += '.long ' + ','.join(f'{x:#x}' for x in w[i:i + 8]) + '\n'
        return o
    v = []
    for blk in range(4):
        for h in range(2):
            for cs in range(2):
                for l in range(64):
                    for e in range(8):
                        row = 16 * blk + (l & 15); col = 32 * h + 16 * (e >> 2) + 4 * (l >> 4) + (e & 3)
                        v.append(bfbits(cosr(row * col - 16 * cs, 64)))
    s += dwords(v)
    v = []
    for ss in range(2):
        for l in range(64):
            for e in range(8):
                n1 = l & 31; row = 16 * ss + 8 * (e >> 2) + 4 * (l >> 5) + (e & 3)
                q = row >> 1; a = PAIRS[q][0]
                if q == 0: val = 1.0 if row == 0 else (-1.0) ** n1
                else: val = cosr(a * n1, 32) if row % 2 == 0 else cosr(a * n1 + 8, 32)
                v.append(bfbits(val))
    s += dwords(v)
    return s

def prologue(P, endlbl):
    P.e(f"s_cmp_ge_u32 s2, {NWG}")
    P.e(f"s_cbranch_scc1 {endlbl}")
    for srd, off in ((8, 0), (24, 8), (28, 16), (12, 32), (16, 40), (20, 48), (32, 56), (44, 64), (36, 72)):
        P.e(f"s_load_dwordx2 s[{srd}:{srd+1}], s[0:1], {off}")
    P.e("s_getpc_b64 s[40:41]")
    P.e("s_add_u32 s40, s40, TABS@rel32@lo+4")
    P.e("s_addc_u32 s41, s41, TABS@rel32@hi+12")
    for srd, size in ((8, 1835008), (12, 1605632), (16, 1605632), (20, 1605632), (24, 921600), (28, 921600), (32, 1835008), (36, WS_SIZE), (40, TAB_SIZE), (44, 256)):
        P.e(f"s_mov_b32 s{srd+2}, {size}")
        P.e(f"s_mov_b32 s{srd+3}, 0x20000")
    P.e(f"""
    v_lshrrev_b32 v2, 6, v0
    v_and_b32 v0, 63, v0
    v_readfirstlane_b32 {sW}, v2
    v_lshlrev_b32 {L16}, 4, v0
    s_and_b32 {sP}, s2, 7
    s_lshr_b32 {sK}, s2, 3
    s_and_b32 {sA}, {sK}, 3
    s_lshr_b32 {sE}, {sK}, 2
    s_lshr_b32 {sI}, {sP}, 1
    s_lshl_b32 {sI}, {sI}, 2
    s_add_u32 {sI}, {sI}, {sA}
    s_and_b32 {sJ}, {sP}, 1
    s_mul_i32 {sJ}, {sJ}, 7
    s_add_u32 {sJ}, {sJ}, {sE}
    s_lshl_b32 {sT}, {sP}, 2
    s_add_u32 {sT}, {sT}, {sA}
    s_lshl_b32 {sN2}, {sI}, 2
    s_add_u32 {sN2}, {sN2}, {sW}
    s_lshl_b32 {sW4K}, {sW}, 12
    s_mov_b32 {sMASK}, 0xffff0000
    s_mov_b32 {sONES}, 0x3f803f80
    """)

def dma(srd, voff, soff, m0expr, imm=0, tag=None, flags=''):
    o = []
    if m0expr is not None:
        o.append(I(f"s_add_u32 m0, {m0expr[0]}, {m0expr[1]}"))
    o.append(I(f"buffer_load_dwordx4 {voff}, {srd}, {soff} offen {'offset:%d ' % imm if imm else ''}{flags} lds", tag))
    return o

def dbslot(d, c):
    return ([9, 0, 1, 2, 3, 4, 5] if d == 0 else [6, 7, 8, 9, 0, 1, 2])[c]
SCR = 143360
def db_dma(d, c):
    base = dbslot(d, c) * SLOT
    koff = 64 * c * 3584 + 128 * d
    tag = f"db{d}_{c}"
    o = [I(f"s_add_u32 {sA}, {sDB0}, {koff}"), I(f"s_add_u32 {sB}, {sDB1}, {koff}")]
    g1 = [o[0]] + dma(W1_, 'v4', sA, (sW4K, base), 0, tag)
    g2 = [o[1]] + dma(W1_, 'v4', sB, None, 1024, tag)
    g3 = dma(W3_, 'v4', sA, (sW4K, base + 2048), 0, tag)
    g4 = dma(W3_, 'v4', sB, None, 1024, tag)
    return [g1, g2, g3, g4]
def db_tr(d, s, m, fb, dst):
    c, q = s >> 2, s & 3
    off = dbslot(d, c) * SLOT + q * 4096 + m * 2048
    win, off = off >> 16, off & 0xffff
    base = f"v{11 + 2 * win + fb}"
    return [I(f"ds_read_b64_tr_b16 {ar(dst, 2)}, {base} offset:{off}"), I(f"ds_read_b64_tr_b16 {ar(dst + 2, 2)}, {base} offset:{off + 512}")]

def epilogue(G, U, fbg):
    o = []
    for half in range(2):
        for quad in range(2):
            r = [8 * half + 4 * quad + k for k in range(4)]
            o += [f"v_mul_f32 v{U+k}, v{G+k}, v{U+k}" for k in r]
            o += [f"v_mul_f32 v{G+k}, v20, v{G+k}" for k in r]
            o += [f"v_exp_f32 v{G+k}, v{G+k}" for k in r]
            o += [f"v_fma_f32 v{G+k}, v{G+k}, v21, v21" for k in r]
            o += [f"v_rcp_f32 v{G+k}, v{G+k}" for k in r]
            o += [f"v_mul_f32 v{U+k}, v{G+k}, v{U+k}" for k in r]
            o += [f"v_cvt_pk_bf16_f32 v{G+8*half+2*quad+z}, v{U+r[2*z]}, v{U+r[2*z+1]}" for z in range(2)]
        st = 2 * fbg + half
        o.append(I(f"buffer_store_dwordx4 {vr(G+8*half, 4)}, {L16}, {WS_}, {sH0 if st < 4 else sH1} offen offset:{(st & 3) * 1024} sc1", f"h{fbg}"))
    return o

def center(s):
    o = []
    for k in range(4):
        r = XF + 4 * s + k; t = 24 + 2 * (k & 1)
        o += [f"v_lshlrev_b32 v{t}, 16, v{r}", f"v_and_b32 v{t+1}, {sMASK}, v{r}",
              f"v_add_f32 v{t}, v19, v{t}", f"v_add_f32 v{t+1}, v19, v{t+1}", f"v_cvt_pk_bf16_f32 v{r}, v{t}, v{t+1}"]
    return o

def w2_dma(u):
    s = 8 * (u % 14) + 4 * (u // 14)
    base = (3 + (u >> 1) % 3) * SLOT + (u & 1) * 2048
    tag = f"w2_{u}"
    return [[I(f"s_add_u32 {sC}, {sW2A}, {s * 16 * 896}")] + dma(W2_, 'v5', sC, (sW4K, base), 0, tag),
            [I(f"s_add_u32 {sD}, {sW2B}, {s * 16 * 896}")] + dma(W2_, 'v5', sD, None, 1024, tag)]
def w2_tr(u):
    off = ((u >> 1) % 3) * SLOT + (u & 1) * 2048
    o = []
    for dt in range(2):
        o += [I(f"ds_read_b64_tr_b16 {ar(8*u+4*dt, 2)}, v{17+dt} offset:{off}", f"w2r_{u}"),
              I(f"ds_read_b64_tr_b16 {ar(8*u+4*dt+2, 2)}, v{17+dt} offset:{off+1024}", f"w2r_{u}")]
    return o
def w2_setup(P):
    P.e(f"""
    v_lshrrev_b32 v23, 3, v0
    v_mul_u32_u24 v5, 896, v23
    v_lshlrev_b32 v23, 1, v23
    v_and_b32 v23, 4, v23
    v_and_b32 v24, 7, v0
    v_xor_b32 v23, v23, v24
    v_lshl_add_u32 v5, v23, 4, v5
    s_mul_i32 {sW2A}, {sW}, {16*896}
    s_lshl_b32 {sA}, {sE}, 7
    s_add_u32 {sW2A}, {sW2A}, {sA}
    s_add_u32 {sW2B}, {sW2A}, {8*896-1024}
    """)
    P.e(f"""
    v_lshrrev_b32 v23, 5, v0
    v_lshlrev_b32 v23, 9, v23
    v_bfe_u32 v24, v0, 2, 2
    v_lshl_add_u32 v23, v24, 7, v23
    v_bfe_u32 v25, v0, 4, 1
    v_lshl_add_u32 v23, v25, 5, v23
    v_and_b32 v25, 3, v0
    v_lshl_add_u32 v23, v25, 3, v23
    v_bfe_u32 v24, v0, 3, 1
    s_and_b32 {sA}, {sW}, 1
    v_xor_b32 v24, {sA}, v24
    v_lshl_add_u32 v23, v24, 6, v23
    s_add_u32 {sA}, {sW4K}, {3*SLOT}
    v_add_u32 v17, {sA}, v23
    v_xor_b32 v18, 64, v17
    """)

def phase_g1(P, fused, rep):
    P.e(f"""
    v_lshrrev_b32 v23, 3, v0
    v_and_b32 v24, 7, v0
    v_lshrrev_b32 v25, 1, v23
    v_xor_b32 v26, v24, v25
    v_mul_u32_u24 v2, 57344, v23
    v_lshl_add_u32 v2, v26, 4, v2
    v_xor_b32 v3, 64, v2
    v_mul_u32_u24 v4, 3584, v23
    v_and_b32 v25, 1, v25
    v_lshlrev_b32 v25, 2, v25
    v_xor_b32 v26, v24, v25
    v_lshl_add_u32 v4, v26, 4, v4
    s_mul_i32 {sDB0}, {sW}, {16*3584}
    s_lshl_b32 {sA}, {sJ}, 8
    s_add_u32 {sDB0}, {sDB0}, {sA}
    s_add_u32 {sDB1}, {sDB0}, {8*3584-1024}
    s_mul_i32 {sC}, {sJ}, 28672
    s_mul_i32 {sA}, {sW}, 7168
    s_add_u32 {sC}, {sC}, {sA}
    s_add_u32 {sD}, {sA}, {7*SLOT}
    s_waitcnt lgkmcnt(0)
    """)
    for u in range(7):
        P.add([I(f"s_add_u32 {sA}, {sC}, {FT + u*1024}")] + dma(TAB_, L16, sA, (sD, u * 1024), 0, 'F'))
    P.e(f"s_mul_i32 {sC}, {sN2}, 896")
    for c in range(7):
        for rb in range(4):
            P.add([I(f"s_add_u32 {sA}, {sC}, {rb*(8*57344-1024) + c*128}")] + dma(X_, 'v3' if rb & 1 else 'v2', sA, (sW4K, c * SLOT) if rb == 0 else None, rb * 1024, f'x{c}'))
    P.add(db_dma(0, 0))
    P.e(f"""
    v_and_b32 v23, 31, v0
    v_lshlrev_b32 v24, 7, v23
    v_add_u32 v24, {sW4K}, v24
    v_bfe_u32 v25, v0, 1, 3
    v_lshrrev_b32 v26, 5, v0
    v_xor_b32 v25, v25, v26
    v_lshl_add_u32 v6, v25, 4, v24
    v_xor_b32 v7, 32, v6
    v_xor_b32 v8, 64, v6
    v_xor_b32 v9, 0x60, v6
    v_add_u32 v10, {7*SLOT}, {L16}
    """)
    P.e(f"""
    v_lshrrev_b32 v23, 5, v0
    v_lshlrev_b32 v23, 10, v23
    v_bfe_u32 v24, v0, 2, 2
    v_lshl_add_u32 v23, v24, 7, v23
    v_bfe_u32 v25, v0, 4, 1
    v_lshl_add_u32 v23, v25, 5, v23
    v_and_b32 v25, 3, v0
    v_lshl_add_u32 v23, v25, 3, v23
    v_bfe_u32 v24, v0, 3, 1
    v_lshl_add_u32 v11, v24, 6, v23
    v_xor_b32 v12, 64, v11
    v_add_u32 v13, 0x10000, v11
    v_add_u32 v14, 0x10000, v12
    v_add_u32 v15, 0x20000, v11
    v_add_u32 v16, 0x20000, v12
    s_mul_i32 {sH0}, {sN2}, {112*1024}
    s_lshl_b32 {sA}, {sJ}, 13
    s_add_u32 {sH0}, {sH0}, {sA}
    s_add_u32 {sH0}, {sH0}, {HBUF}
    s_add_u32 {sH1}, {sH0}, 4096
    """)
    if fused: w2_setup(P)
    P.e(f"""
    v_bfe_u32 v23, v0, 2, 3
    v_lshlrev_b32 v22, 13, v23
    v_lshrrev_b32 v24, 5, v0
    v_lshl_add_u32 v22, v24, 6, v22
    v_and_b32 v25, 3, v0
    v_lshl_add_u32 v22, v25, 4, v22
    v_and_b32 v25, 1, v0
    v_lshl_add_u32 v23, v23, 1, v25
    v_sub_u32 v25, 32, v23
    v_cmp_eq_u32 vcc, 0, v23
    v_cndmask_b32 v25, v25, 16, vcc
    v_and_b32 v26, 2, v0
    v_cmp_eq_u32 vcc, 0, v26
    v_cndmask_b32 v23, v25, v23, vcc
    v_cvt_f32_u32 v23, v23
    v_lshlrev_b32 v24, 8, v24
    v_add_u32 v24, {sN2}, v24
    v_cvt_f32_u32 v24, v24
    v_mul_f32 v24, v23, v24
    v_mul_f32 v24, {f32bits(1/2048):#x}, v24
    v_mul_f32 v23, {f32bits(1/32):#x}, v23
    """)
    for ss in range(2):
        for z in range(4):
            for y in range(2):
                e = 2 * z + y
                n1off = 16 * ss + 8 * (e >> 2) + (e & 3)
                P.e(f"s_mov_b32 {sA}, {f32bits(float(n1off)):#x}")
                P.e(f"v_fma_f32 v{26+y}, v23, {sA}, v24")
                P.e(f"v_fract_f32 v{26+y}, v{26+y}")
            P.e("v_cos_f32 v28, v26\nv_cos_f32 v29, v27\nv_sin_f32 v30, v26\nv_sin_f32 v31, v27")
            P.e("v_cvt_pk_bf16_f32 v28, v28, v29\nv_cvt_pk_bf16_f32 v30, v30, v31")
            P.e(f"v_accvgpr_write_b32 a{4*ss+z}, v28\nv_accvgpr_write_b32 a{8+4*ss+z}, v30")
    P.e("v_mov_b32 v28, 0\nv_mov_b32 v29, 0\nv_mov_b32 v30, 0\nv_mov_b32 v31, 0")
    P.waitvm('F'); P.e("s_barrier")
    DA = ACC[4]
    def rd(c):
        o = []
        for q in range(4):
            s = 4 * c + q
            o.append(I(f"ds_read_b128 {vr(XF+4*s, 4)}, v{6+q} offset:{(c & 3) * SLOT}", f"xr{c}"))
            o.append(I(f"ds_read_b128 {ar(ABUF+16*(c&1)+4*q, 4)}, v10 offset:{s*1024}"))
        return o
    P.waitvm('x0'); P.add(rd(0))
    for c in range(7):
        P.waitlg(f'xr{c}')
        P.add(db_dma(0, c + 1) if c < 6 else db_dma(1, 0))
        for q in range(4):
            s = 4 * c + q
            P.e(f"v_mfma_f32_32x32x16_bf16 {vr(DA,16)}, {vr(XF+4*s,4)}, {ar(ABUF+16*(c&1)+4*q,4)}, {vr(DA,16) if s else 0}")
        if c == 3:
            for q in range(4): P.e(f"v_add_u32 v{6+q}, 0x10000, v{6+q}")
        if c < 6:
            P.waitvm(f'x{c+1}'); P.add(rd(c + 1))
        for r in range(16):
            x = XF + 16 * c + r
            P.e(f"v_dot2c_f32_bf16 v{28+(r&1)}, {sONES}, v{x}")
            P.e(f"v_dot2c_f32_bf16 v{30+(r&1)}, v{x}, v{x}")
    P.waitvm('db0_0'); P.e("s_barrier")
    P.add(db_dma(1, 1))
    P.e(f"""
    s_nop 2
    v_add_f32 v28, v28, v29
    v_add_f32 v30, v30, v31
    v_mov_b32 v29, v28
    v_mov_b32 v31, v30
    v_permlane32_swap_b32 v28, v29
    v_permlane32_swap_b32 v30, v31
    v_add_f32 v28, v28, v29
    v_add_f32 v30, v30, v31
    v_mul_f32 v19, {f32bits(-1/448):#x}, v28
    v_mul_f32 v30, {f32bits(1/448):#x}, v30
    v_fma_f32 v30, -v19, v19, v30
    v_max_f32 v30, 0, v30
    v_add_f32 v21, {f32bits(1e-5):#x}, v30
    v_rsq_f32 v29, v21
    v_and_b32 v23, 31, v0
    s_lshl_b32 {sA}, {sW}, 7
    s_add_u32 {sA}, {sA}, {SCR}
    v_lshl_add_u32 v23, v23, 2, {sA}
    ds_write_b32 v23, v29
    v_mul_f32 v20, {f32bits(-math.log2(math.e)):#x}, v29
    v_lshrrev_b32 v23, 5, v0
    v_lshl_add_u32 v23, v23, 4, {sA}
    s_waitcnt lgkmcnt(0)
    """)
    for q in range(4):
        P.e(f"ds_read_b128 {vr(ACC[5]+4*q,4)}, v23 offset:{32*q}", 'rs')
    for tile, (m, fb) in enumerate(((0, 0), (1, 0), (0, 1), (1, 1))):
        P.add(db_tr(0, 0, m, fb, ABUF + 4 * tile))
    P.add(center(0))
    tiles = ((0, 0, ACC[0]), (1, 0, ACC[2]), (0, 1, ACC[1]), (1, 1, ACC[3]))
    spine = []; idx = {}
    SB = 3
    for s in range(28):
        for t, (m, fb, acc) in enumerate(tiles):
            idx[s, t] = len(spine)
            spine.append(f"v_mfma_f32_32x32x16_bf16 {vr(acc,16)}, {ar(ABUF+16*(s&1)+4*t,4)}, {vr(XF+4*s,4)}, {vr(acc,16) if s else 0}")
        if s == SB:
            idx['B'] = len(spine)
            for ss in range(2):
                spine.append(f"v_mfma_f32_32x32x16_bf16 {vr(ACC[5],16)}, {vr(240+4*ss,4)}, {ar(4*ss,4)}, {vr(ACC[5],16) if ss else 0}")
                spine.append(f"v_mfma_f32_32x32x16_bf16 {vr(ACC[4],16)}, {vr(240+4*ss,4)}, {ar(8+4*ss,4)}, {vr(ACC[4],16) if ss else 0}")
    n0 = len(spine)
    trs = []; dmas = []
    for s in range(1, 28):
        if s % 4 == 0:
            c = s // 4
            g = idx[s - 1, 0] - 1
            trs.append((g, g, [WaitVM(f'db0_{c}'), I('s_barrier')]))
            nxt = {1: (1, 2), 2: (1, 3), 3: (1, 4), 4: (1, 5), 5: (1, 6)}.get(c)
            if nxt:
                for k, grp in enumerate(db_dma(*nxt)): dmas.append((g + 1, g + 4 + 3 * k, grp))
        for t, (m, fb, acc) in enumerate(tiles):
            lo = idx[s - 2, t] if s >= 2 else -1
            for x in db_tr(0, s, m, fb, ABUF + 16 * (s & 1) + 4 * t): trs.append((lo, idx[s - 1, t], x))
    cen = []
    for s in range(1, 28):
        for x in center(s): cen.append((idx[max(s - 2, 0), 0], idx[s, 0] - 2, x))
    stb = []
    b0 = idx['B']
    for r in range(16): stb.append((0, b0 - 2, f"v_mul_f32 v{ACC[4]+r}, v{ACC[5]+r}, v{ACC[4]+r}"))
    for z in range(8): stb.append((0, b0 - 2, f"v_cvt_pk_bf16_f32 v{240+z}, v{ACC[4]+2*z}, v{ACC[4]+2*z+1}"))
    Pp, Q = ACC[5], ACC[4]
    lo, hi = b0 + 6, b0 + 30
    for r in range(8):
        stb.append((lo, hi, f"v_add_f32 v{Pp+r}, v{Pp+r}, v{Q+8+r}"))
        stb.append((lo, hi, f"v_sub_f32 v{Pp+8+r}, v{Pp+8+r}, v{Q+r}"))
    for sub in range(2):
        o = 240 + 4 * sub
        for z in range(2):
            stb.append((lo, hi, f"v_cvt_pk_bf16_f32 v{o+z}, v{Pp+4*sub+2*z}, v{Pp+4*sub+2*z+1}"))
            stb.append((lo, hi, f"v_cvt_pk_bf16_f32 v{o+2+z}, v{Pp+8+4*sub+2*z}, v{Pp+8+4*sub+2*z+1}"))
    stb.append((lo, hi, [f"s_lshl_b32 {sC}, {sJ}, 17", f"s_lshl_b32 {sD}, {sN2}, 7"]))
    stb.append((lo, hi, [f"s_add_u32 {sC}, {sC}, {sD}", f"s_add_u32 {sC}, {sC}, {YBUF}", f"s_add_u32 {sD}, {sC}, 65536"]))
    for sub in range(2):
        o = 240 + 4 * sub
        stb.append((lo, hi, f"v_permlane32_swap_b32 v{o}, v{o+2}"))
        stb.append((lo, hi, f"v_permlane32_swap_b32 v{o+1}, v{o+3}"))
    for sub in range(2):
        stb.append((lo, hi, I(f"buffer_store_dwordx4 {vr(240+4*sub,4)}, v22, {WS_}, {sD if sub else sC} offen sc1", 'Y')))
    for half in range(2):
        accs = (ACC[4], ACC[5]) if half == 0 else (ACC[0], ACC[2])
        for s in range(28):
            for m in range(2):
                k = 28 * half + s
                idx['p1', k, m] = len(spine)
                spine.append(f"v_mfma_f32_32x32x16_bf16 {vr(accs[m],16)}, {ar(ABUF+8*(k&3)+4*m,4)}, {vr(XF+4*s,4)}, {vr(accs[m],16) if s else 0}")
    for k in range(56):
        half, s = divmod(k, 28)
        if k == 0:
            g = idx[27, 0] - 1
            trs.append((g, g, [WaitVM([f'db1_{c}' for c in range(5)]), I('s_barrier')]))
        if k == 18:
            g = idx['p1', 14, 0]
            trs.append((g, g, [WaitVM(['db1_5', 'db1_6']), I('s_barrier')]))
        for m in range(2):
            if k >= 4: lo = idx['p1', k - 4, m]
            else: lo = idx[26 + (k >> 1), 2 * (k & 1) + m]
            dl = idx['p1', k, m] - 4
            lo = min(lo, dl) if k >= 4 else lo
            for x in db_tr(1, s, m, half, ABUF + 8 * (k & 3) + 4 * m): trs.append((lo, max(dl, lo), x))
    epi = []
    for x in epilogue(ACC[0], ACC[2], 0): epi.append((n0 + 1, idx['p1', 28, 0] - 2, x))
    for x in epilogue(ACC[1], ACC[3], 1): epi.append((n0 + 1, len(spine) - 30, x))
    for x in epilogue(ACC[4], ACC[5], 2): epi.append((idx['p1', 28, 0] + 2, len(spine) - 1, x))
    streams = [trs, cen, stb, dmas, epi]
    P.add(weave(spine, streams, cap=5, report=rep))
    P.add(epilogue(ACC[0], ACC[2], 3))

def phase_c(P, fused):
    YL, ZL, TL = 0, 8192, 16384
    CC, SS, NS = 32, 48, 64
    WRr, WIr = 80, 88
    YF = 96
    XA = 112
    ZF = 128
    VA = 160
    CO = 176
    P.e(f"""
    v_lshrrev_b32 v23, 3, v0
    v_bfe_u32 v24, v0, 4, 2
    v_lshlrev_b32 v24, 1, v24
    v_and_b32 v25, 7, v0
    v_xor_b32 v24, v24, v25
    v_lshlrev_b32 v2, 7, v23
    v_lshl_add_u32 v2, v24, 4, v2
    s_lshl_b32 {sA}, {sK}, 3
    s_add_u32 {sA}, {sA}, {sP}
    s_lshl_b32 {sA}, {sA}, 13
    s_lshl_b32 {sB}, {sW}, 11
    s_add_u32 {sA}, {sA}, {sB}
    s_add_u32 {sA}, {sA}, {YBUF}
    """)
    if not fused: P.e("s_waitcnt lgkmcnt(0)")
    P.add(dma(WS_, 'v2', sA, (sB, YL), 0, 'Yl', 'sc1'))
    P.add(dma(WS_, 'v2', sA, None, 1024, 'Yl', 'sc1'))
    for tt in range(2):
        P.e(f"s_xor_b32 {sA}, {sW}, {tt}\ns_lshl_b32 {sA}, {sA}, 12\ns_add_u32 {sA}, {sA}, {CT}")
        for s in range(2):
            P.e(f"buffer_load_dwordx4 {vr(CC+8*tt+4*s,4)}, {L16}, {TAB_}, {sA} offen offset:{2048*s}")
            P.e(f"buffer_load_dwordx4 {vr(SS+8*tt+4*s,4)}, {L16}, {TAB_}, {sA} offen offset:{2048*s+1024}")
    P.e(f"""
    v_bfe_u32 v23, v0, 3, 1
    s_lshl_b32 {sA}, {sP}, 1
    v_add_u32 v23, {sA}, v23
    v_sub_u32 v24, 32, v23
    v_cmp_eq_u32 vcc, 0, v23
    v_cndmask_b32 v24, v24, 16, vcc
    s_and_b32 {sA}, {sW}, 1
    s_cmp_eq_u32 {sA}, 0
    s_cselect_b64 vcc, -1, 0
    v_cndmask_b32 v23, v24, v23, vcc
    v_lshrrev_b32 v24, 4, v0
    v_lshl_add_u32 v23, v24, 7, v23
    v_mul_u32_u24 v3, 450, v23
    v_and_b32 v24, 7, v0
    v_lshl_add_u32 v3, v24, 1, v3
    """)
    for r in range(16): P.e(f"v_mov_b32 v{WRr+r}, 0")
    for tt in range(2):
        P.e(f"s_xor_b32 {sB}, {sW}, {tt}\ns_mul_i32 {sB}, {sB}, {16*32*450}\ns_lshl_b32 {sC}, {sK}, 4\ns_add_u32 {sB}, {sB}, {sC}")
        for r in range(4):
            P.e(f"s_add_u32 {sA}, {sB}, {r*14400+2}")
            P.e(f"buffer_load_short_d16_hi v{WRr+4*tt+r}, v3, {WR_}, {sA} offen")
            P.e(f"buffer_load_short_d16_hi v{WIr+4*tt+r}, v3, {WI_}, {sA} offen")
    sc = 2.0 / (2048 * 448)
    P.e(f"""
    v_lshrrev_b32 v23, 5, v0
    s_lshl_b32 {sA}, {sP}, 1
    v_add_u32 v23, {sA}, v23
    v_sub_u32 v24, 32, v23
    v_cmp_eq_u32 vcc, 0, v23
    v_cndmask_b32 v24, v24, 16, vcc
    v_and_b32 v25, 15, v0
    s_lshl_b32 {sA}, {sW}, 4
    v_add_u32 v25, {sA}, v25
    v_mul_u32_u24 v23, v23, v25
    v_mul_u32_u24 v24, v24, v25
    v_cvt_f32_u32 v23, v23
    v_cvt_f32_u32 v24, v24
    v_mul_f32 v23, {f32bits(1/2048):#x}, v23
    v_mul_f32 v24, {f32bits(1/2048):#x}, v24
    v_cos_f32 v{CO}, v23
    v_sin_f32 v{CO+1}, v23
    v_cos_f32 v26, v24
    v_sin_f32 v27, v24
    v_mul_f32 v{CO}, {f32bits(sc):#x}, v{CO}
    v_mul_f32 v{CO+1}, {f32bits(sc):#x}, v{CO+1}
    v_mul_f32 v26, {f32bits(sc):#x}, v26
    v_mul_f32 v27, {f32bits(sc):#x}, v27
    v_sub_f32 v28, 0, v{CO}
    v_sub_f32 v29, 0, v27
    v_cndmask_b32 v{CO+2}, v26, 0, vcc
    v_cndmask_b32 v{CO+3}, v27, 0, vcc
    v_cndmask_b32 v{CO+4}, v{CO+1}, 0, vcc
    v_cndmask_b32 v{CO+5}, v28, 0, vcc
    v_cndmask_b32 v{CO+6}, v29, v26, vcc
    v_cndmask_b32 v{CO+7}, v26, v27, vcc
    """)
    P.e(f"""
    v_lshrrev_b32 v23, 2, v0
    v_lshlrev_b32 v4, 7, v23
    v_bfe_u32 v24, v0, 3, 2
    s_and_b32 {sA}, {sW}, 1
    v_xor_b32 v24, {sA}, v24
    v_lshl_add_u32 v4, v24, 5, v4
    v_and_b32 v24, 3, v0
    v_lshl_add_u32 v4, v24, 3, v4
    v_xor_b32 v9, 64, v4
    s_lshl_b32 {sB}, {sA}, 12
    s_lshr_b32 {sC}, {sW}, 1
    s_lshl_b32 {sC}, {sC}, 11
    s_add_u32 {sB}, {sB}, {sC}
    s_lshl_b32 {sA}, {sA}, 3
    s_add_u32 {sB}, {sB}, {sA}
    s_add_u32 {sB}, {sB}, {ZL}
    v_add_u32 v5, {sB}, {L16}
    v_xor_b32 v10, 8, v5
    v_and_b32 v23, 15, v0
    v_bfe_u32 v24, v0, 4, 1
    s_lshr_b32 {sA}, {sP}, 2
    v_xor_b32 v24, {sA}, v24
    v_lshlrev_b32 v24, 2, v24
    v_lshrrev_b32 v25, 5, v0
    v_lshl_add_u32 v24, v25, 1, v24
    v_and_b32 v25, 7, v0
    v_xor_b32 v24, v24, v25
    v_lshlrev_b32 v6, 7, v23
    v_lshl_add_u32 v6, v24, 4, v6
    s_lshl_b32 {sA}, {sW}, 11
    s_add_u32 {sA}, {sA}, {TL}
    v_add_u32 v6, {sA}, v6
    v_xor_b32 v11, 16, v6
    v_lshrrev_b32 v23, 3, v0
    v_xor_b32 v24, v23, v25
    v_lshlrev_b32 v7, 7, v23
    v_lshl_add_u32 v7, v24, 4, v7
    v_add_u32 v7, {sA}, v7
    v_mul_u32_u24 v8, 28672, v23
    v_lshl_add_u32 v8, v25, 4, v8
    """)
    for r in range(16): P.e(f"v_xor_b32 v{NS+r}, 0x80008000, v{SS+r}")
    P.waitvm('Yl'); P.e("s_barrier")
    for part in range(2):
        for s in range(2):
            for t in range(2):
                P.e(f"ds_read_b64_tr_b16 {vr(YF+8*part+4*s+2*t,2)}, {'v9' if part else 'v4'} offset:{YL+(32*s+16*t)*128}")
    M = "v_mfma_f32_16x16x32_bf16"
    for k4 in range(4):
        s, term = k4 >> 1, k4 & 1
        for part in range(2):
            for tt in range(2):
                acc = XA + 8 * part + 4 * tt
                if term == 0: A, B = CC + 8 * tt + 4 * s, YF + 8 * part + 4 * s
                else: A, B = (NS if part else SS) + 8 * tt + 4 * s, YF + 8 * (1 - part) + 4 * s
                P.e(f"{M} {vr(acc,4)}, {vr(A,4)}, {vr(B,4)}, {vr(acc,4) if k4 else 0}")
    for r in range(8):
        P.e(f"v_mul_f32 v{ZF+r}, v{XA+r}, v{WRr+r}\nv_mul_f32 v{ZF+8+r}, v{XA+r}, v{WIr+r}")
    for r in range(8):
        P.e(f"v_fma_f32 v{ZF+r}, -v{XA+8+r}, v{WIr+r}, v{ZF+r}\nv_fma_f32 v{ZF+8+r}, v{XA+8+r}, v{WRr+r}, v{ZF+8+r}")
    for z in range(8): P.e(f"v_cvt_pk_bf16_f32 v{24+z}, v{ZF+2*z}, v{ZF+2*z+1}")
    for part in range(2):
        P.e(f"ds_write_b64 v5, {vr(24+4*part,2)} offset:{1024*part}\nds_write_b64 v10, {vr(26+4*part,2)} offset:{1024*part}")
    P.e("s_waitcnt lgkmcnt(0)\ns_barrier")
    for f in range(8): P.e(f"ds_read_b128 {vr(ZF+4*f,4)}, {L16} offset:{ZL+1024*f}")
    for k4 in range(4):
        s, term = k4 >> 1, k4 & 1
        for c in range(2):
            for part in range(2):
                acc = VA + 8 * c + 4 * part
                A = ZF + 16 * c + 8 * s + 4 * term
                B = ((CC, NS), (SS, CC))[part][term] + 4 * s
                P.e(f"{M} {vr(acc,4)}, {vr(A,4)}, {vr(B,4)}, {vr(acc,4) if k4 else 0}")
    O = 96
    for row in range(2):
        c1, c2 = CO + 4 * row, CO + 4 * row + 2
        for r in range(4):
            P.e(f"v_mul_f32 v{O+8*row+r}, v{c1}, v{VA+r}\nv_mul_f32 v{O+8*row+4+r}, v{c1}, v{VA+4+r}")
        for r in range(4):
            P.e(f"v_fma_f32 v{O+8*row+r}, -v{c1+1}, v{VA+4+r}, v{O+8*row+r}\nv_fma_f32 v{O+8*row+4+r}, v{c1+1}, v{VA+r}, v{O+8*row+4+r}")
        for r in range(4):
            P.e(f"v_fma_f32 v{O+8*row+r}, v{c2}, v{VA+8+r}, v{O+8*row+r}\nv_fma_f32 v{O+8*row+4+r}, v{c2}, v{VA+12+r}, v{O+8*row+4+r}")
        for r in range(4):
            P.e(f"v_fma_f32 v{O+8*row+r}, -v{c2+1}, v{VA+12+r}, v{O+8*row+r}\nv_fma_f32 v{O+8*row+4+r}, v{c2+1}, v{VA+8+r}, v{O+8*row+4+r}")
        for z in range(4): P.e(f"v_cvt_pk_bf16_f32 v{24+4*row+z}, v{O+8*row+2*z}, v{O+8*row+2*z+1}")
        P.e(f"ds_write_b128 {'v11' if row else 'v6'}, {vr(24+4*row,4)}")
    P.e(f"""
    s_lshl_b32 {sA}, {sW}, 4
    s_mul_i32 {sA}, {sA}, 28672
    s_lshl_b32 {sB}, {sK}, 10
    s_add_u32 {sA}, {sA}, {sB}
    s_lshl_b32 {sB}, {sP}, 7
    s_add_u32 {sA}, {sA}, {sB}
    s_add_u32 {sA}, {sA}, {TBUF}
    s_add_u32 {sB}, {sA}, {8*28672}
    s_waitcnt lgkmcnt(0)
    ds_read_b128 v[24:27], v7
    ds_read_b128 v[28:31], v7 offset:1024
    """)
    P.e(f"buffer_store_dwordx4 v[24:27], v8, {WS_}, {sA} offen sc1", 'T')
    P.e(f"buffer_store_dwordx4 v[28:31], v8, {WS_}, {sB} offen sc1", 'T')

IMG, TLD, IFL = 0, 49152, 106496
def if_dma():
    return [[I(f"s_add_u32 {sC}, {sA}, {u*1024}")] + dma(TAB_, L16, sC, (sB, u * 1024), 0, 'iF') for u in range(14)]
def phase_g2(P, fused, rep):
    HB, HD = 32, 8
    GA = [144 + 16 * i for i in range(4)]
    D1, SA = 208, 224
    XR, XU, DPF = 96, 104, 120
    if not fused:
        w2_setup(P)
        P.e("s_waitcnt lgkmcnt(0)")
        for u in range(6): P.add(w2_dma(u))
        for u in range(28):
            P.waitvm(f'w2_{u}'); P.add(w2_tr(u))
            if u + 6 < 28:
                P.waitlg(f'w2r_{u}'); P.add(w2_dma(u + 6))
        P.e("s_waitcnt lgkmcnt(0)\ns_barrier")
        P.e(f"s_mul_i32 {sA}, {sE}, 57344\ns_mul_i32 {sB}, {sW}, 14336\ns_add_u32 {sA}, {sA}, {sB}\ns_add_u32 {sA}, {sA}, {IFT}\ns_add_u32 {sB}, {sB}, {IFL}")
        P.add(if_dma())
    P.e(f"""
    s_lshr_b32 {sA}, {sW}, 1
    s_lshl_b32 {sB}, {sT}, 1
    s_add_u32 {sN2}, {sA}, {sB}
    s_mul_i32 {sH0}, {sN2}, {112*1024}
    s_xor_b32 {sA}, {sN2}, 1
    s_mul_i32 {sH1}, {sA}, {112*1024}
    s_lshl_b32 {sA}, {sW}, 10
    s_add_u32 {sA}, {sA}, {HBUF}
    s_add_u32 {sH0}, {sH0}, {sA}
    s_add_u32 {sH1}, {sH1}, {sA}
    """)
    def hload(u):
        s = 8 * (u % 14) + 4 * (u // 14)
        b = HB + 8 * (u % HD)
        return [[I(f"s_add_u32 {sA}, {sH0}, {s*1024}"), I(f"buffer_load_dwordx4 {vr(b,4)}, {L16}, {WS_}, {sA} offen sc1")],
                [I(f"s_add_u32 {sB}, {sH1}, {s*1024}"), I(f"buffer_load_dwordx4 {vr(b+4,4)}, {L16}, {WS_}, {sB} offen sc1")]]
    for u in range(HD): P.add(hload(u))
    P.e(f"""
    v_and_b32 v23, 31, v0
    v_mul_u32_u24 v2, 57344, v23
    v_lshrrev_b32 v24, 5, v0
    v_lshl_add_u32 v2, v24, 4, v2
    s_mul_i32 {sDB0}, {sN2}, 896
    s_lshl_b32 {sA}, {sE}, 7
    s_add_u32 {sDB0}, {sDB0}, {sA}
    s_and_b32 {sA}, {sW}, 1
    s_lshl_b32 {sB}, {sA}, 6
    s_add_u32 {sDB0}, {sDB0}, {sB}
    buffer_load_dwordx4 {vr(XR,4)}, v2, {X_}, {sDB0} offen
    buffer_load_dwordx4 {vr(XR+4,4)}, v2, {X_}, {sDB0} offen offset:32
    s_mov_b32 {sB}, {DP}
    buffer_load_dwordx4 {vr(DPF,4)}, {L16}, {TAB_}, {sB} offen
    buffer_load_dwordx4 {vr(DPF+4,4)}, {L16}, {TAB_}, {sB} offen offset:1024
    s_mul_i32 {sA}, {sA}, 28672
    s_add_u32 {sA}, {sA}, {IFL}
    v_add_u32 v3, {sA}, {L16}
    v_bfe_u32 v25, v0, 2, 3
    v_lshlrev_b32 v4, 7, v25
    v_bfe_u32 v25, v0, 4, 1
    v_xor_b32 v25, v25, v24
    v_lshl_add_u32 v4, v25, 6, v4
    v_and_b32 v25, 3, v0
    v_lshl_add_u32 v4, v25, 4, v4
    s_lshr_b32 {sA}, {sW}, 1
    s_mul_i32 {sA}, {sA}, 28672
    s_add_u32 {sA}, {sA}, {TLD}
    v_add_u32 v4, {sA}, v4
    """)
    for lam in range(1, 4):
        P.e(f"s_xor_b32 {sA}, {sW}, {lam}\ns_mul_i32 {sA}, {sA}, 12288\ns_add_u32 {sA}, {sA}, {IMG+(lam-1)*4096}\nv_add_u32 v{4+lam}, {sA}, {L16}")
    P.e(f"s_mul_i32 {sA}, {sW}, 12288\ns_add_u32 {sA}, {sA}, {IMG}\nv_add_u32 v8, {sA}, {L16}")
    P.e(f"s_mul_i32 {sW2A}, {sT}, 57344\ns_mul_i32 {sW2B}, {sW}, 14336\ns_add_u32 {sW2A}, {sW2A}, {sW2B}\ns_add_u32 {sW2A}, {sW2A}, {TBUF}\ns_add_u32 {sW2B}, {sW2B}, {TLD}")
    M = "v_mfma_f32_32x32x16_bf16"
    spine = []
    for u in range(28):
        for lam in range(4):
            th, dt = lam >> 1, lam & 1
            spine.append(f"{M} {vr(GA[lam],16)}, {ar(8*u+4*dt,4)}, {vr(HB+8*(u%HD)+4*th,4)}, {vr(GA[lam],16) if u else 0}")
    n0 = len(spine)
    for z in range(28):
        spine.append(f"{M} {vr(D1,16)}, {ar(112+4*z,4)}, {ar(4*z,4)}, {vr(D1,16) if z else 0}")
    hl = []
    for u in range(HD, 28):
        for k, grp in enumerate(hload(u)): hl.append((4 * (u - HD) + 1 + 2 * k, 4 * (u - HD) + 3 + 2 * k, grp))
    TG = 40
    td = []
    for u in range(14):
        td.append((TG + 2 * u, TG + 2 * u + 6, [I(f"s_add_u32 {sC}, {sW2A}, {u*1024}")] + dma(WS_, L16, sC, (sW2B, u * 1024), 0, 'Tl', 'sc1')))
    rd = [(3, 3, [WaitVM('iF'), I('s_barrier')])]
    for z in range(28): rd.append((4 * (z >> 1) + 3, 4 * (z >> 1) + 12, f"ds_read_b128 {ar(4*z,4)}, v3 offset:{1024*z}"))
    rd.append((96, 100, [WaitVM('Tl'), I('s_barrier')]))
    for z in range(28): rd.append((max(96, 4 * (14 + (z >> 1)) + 3), max(n0 + z - 4, 4 * (14 + (z >> 1)) + 3), f"ds_read_b128 {ar(112+4*z,4)}, v4 offset:{1024*z}"))
    xs = []
    for qq in range(2):
        for z in range(2): xs.append((60, 90, f"v_permlane32_swap_b32 v{XR+4*qq+z}, v{XR+4*qq+2+z}"))
    for z in range(8):
        xs.append((60, 90, f"v_lshlrev_b32 v{XU+2*z}, 16, v{XR+z}"))
        xs.append((60, 90, f"v_and_b32 v{XU+2*z+1}, {sMASK}, v{XR+z}"))
    red = []
    for lam in range(1, 4):
        for q in range(4): red.append((n0 + 1, n0 + 6, I(f"ds_write_b128 v{4+lam}, {vr(GA[lam]+4*q,4)} offset:{1024*q}", 'pw')))
    red.append((n0 + 1, n0 + 8, [WaitLG('pw'), I('s_barrier')]))
    for lam in range(1, 4):
        for q in range(4): red.append((n0 + 1, n0 + 12, f"ds_read_b128 {vr(GA[lam]+4*q,4)}, v8 offset:{(lam-1)*4096+1024*q}"))
    G = GA[0]; last = len(spine) - 1
    P.e(f"s_mov_b32 {sDB1}, {f32bits(-math.log2(math.e)):#x}")
    for quad in range(4):
        r = [4 * quad + k for k in range(4)]
        for lam in range(1, 4):
            for k in r: red.append((n0 + 1, last, f"v_add_f32 v{G+k}, v{G+k}, v{GA[lam]+k}"))
        T = GA[1]
        for k in r: red.append((n0 + 1, last, f"v_mul_f32 v{T+k}, {sDB1}, v{G+k}"))
        for k in r: red.append((n0 + 1, last, f"v_exp_f32 v{T+k}, v{T+k}"))
        for k in r: red.append((n0 + 1, last, f"v_add_f32 v{T+k}, 1.0, v{T+k}"))
        for k in r: red.append((n0 + 1, last, f"v_rcp_f32 v{T+k}, v{T+k}"))
        for k in r: red.append((n0 + 1, last, f"v_mul_f32 v{G+k}, v{G+k}, v{T+k}"))
    P.add(weave(spine, [hl, td, rd, xs, red], cap=6, report=rep))
    for z in range(8): P.e(f"v_cvt_pk_bf16_f32 v{24+z}, v{D1+2*z}, v{D1+2*z+1}")
    for ss in range(2): P.e(f"{M} {vr(SA,16)}, {vr(24+4*ss,4)}, {vr(DPF+4*ss,4)}, {vr(SA,16) if ss else 0}")
    for r in range(16): P.e(f"v_fma_f32 v{G+r}, v{SA+r}, v{G+r}, v{XU+r}")
    for z in range(8): P.e(f"v_cvt_pk_bf16_f32 v{24+z}, v{G+2*z}, v{G+2*z+1}")
    for qq in range(2):
        for z in range(2): P.e(f"v_permlane32_swap_b32 v{24+4*qq+z}, v{24+4*qq+2+z}")
    P.e(f"buffer_store_dwordx4 v[24:27], v2, {OUT_}, {sDB0} offen")
    P.e(f"buffer_store_dwordx4 v[28:31], v2, {OUT_}, {sDB0} offen offset:32")

def kernel_text(label, body):
    return f".globl {label}\n.p2align 8\n.type {label},@function\n{label}:\n{body}"
def descriptor(label):
    return f""".p2align 6
.amdhsa_kernel {label}
  .amdhsa_next_free_vgpr 512
  .amdhsa_next_free_sgpr 102
  .amdhsa_accum_offset 256
  .amdhsa_group_segment_fixed_size 0
  .amdhsa_kernarg_size 80
  .amdhsa_user_sgpr_count 2
  .amdhsa_user_sgpr_kernarg_segment_ptr 1
  .amdhsa_system_sgpr_workgroup_id_x 1
.end_amdhsa_kernel
"""
def build_split():
    rep = []
    ks = []
    for lbl, fn in (("g1_kernel", lambda P: phase_g1(P, False, rep)), ("c_kernel", lambda P: phase_c(P, False)), ("g2_kernel", lambda P: phase_g2(P, False, rep))):
        P = Prog(); prologue(P, f"L_end_{lbl}"); fn(P)
        P.raw(f"L_end_{lbl}:"); P.e("s_endpgm")
        ks.append((lbl, P.finalize())); print(lbl, P.stats, file=sys.stderr)
    for r in rep: print(r, sum(max(32, 8 + 4 * x) for x in r[1:]), file=sys.stderr)
    s = "".join(f"; @launch kernel={l} grid=({NWG},1,1) block=(256,1,1) lds=163840\n" for l, _ in ks)
    s += '.amdgcn_target "amdgcn-amd-amdhsa--gfx950"\n.text\n'
    s += "".join(kernel_text(l, b) for l, b in ks)
    s += '.section .rodata,"a"\n' + "".join(descriptor(l) for l, _ in ks) + tables()
    return s
if __name__ == "__main__":
    mode = sys.argv[1]; out = sys.argv[2]
    open(out, "w").write(build_split())
```

```python
import sys, math
import numpy as np
from asmlib import *

NAME = "recurrent_scan__spectral_gfnet__glu_gated_swiglu__prompt"
NWG = 224
HBUF = 0; YBUF = 0x700000; TBUF = 0x8C0000; FLG = 0xA80000; STAMP = 0xA90000; WS_SIZE = 0xB00000
FT = 0; IFT = 401408; CT = 802816; DP = 819200; TAB_SIZE = 821248
SLOT = 16384
X_, W1_, W3_, W2_, WR_, WI_, OUT_, WS_, TAB_, DBG_ = [f"s[{8+4*i}:{11+4*i}]" for i in range(10)]
sW, sI, sJ, sP, sK, sT, sE, sN2 = 's48', 's49', 's50', 's51', 's52', 's53', 's54', 's55'
sMASK, sONES = 's56', 's57'
sW4K = 's58'
sA, sB, sC, sD = 's60', 's61', 's62', 's63'
sDB0, sDB1 = 's64', 's65'
sH0, sH1 = 's66', 's67'
sW2A, sW2B = 's68', 's69'
sNONCE = 's70'
def vr(a, n): return f"v[{a}:{a+n-1}]"
def ar(a, n): return f"a[{a}:{a+n-1}]"
XF = 32
ACC = [144 + 16 * i for i in range(6)]
ABUF = 224
L16 = 'v1'

def bfbits(x):
    u = int(np.float32(x).view(np.uint32))
    return ((u + 0x7FFF + ((u >> 16) & 1)) >> 16) & 0xFFFF
def f32bits(x): return int(np.float32(x).view(np.uint32))
def cosr(i, n):
    i %= n
    if 2 * i > n: i = n - i
    if 4 * i == n: return 0.0
    if 4 * i > n: return -math.cos(2 * math.pi * (n - 2 * i) / (2 * n))
    return math.cos(2 * math.pi * i / n)
PAIRS = [(0, 16)] + [(a, 32 - a) for a in range(1, 16)]

def tables():
    s = '.p2align 8\n'
    for i in range(448):
        s += f".set ct{i}, {bfbits(cosr(i, 448)):#x}\n"
    s += ".set ct448, 0x3f00\n.set ct449, 0xbf00\n.set ct450, 0\n"
    md = lambda x: f"%(({x})-(({x})/448)*448)"
    s += r"""
.altmacro
.macro E8 a,b,c,d,e,f,g,h
.short ct\a,ct\b,ct\c,ct\d,ct\e,ct\f,ct\g,ct\h
.endm
.macro M8 p,k
E8 """ + ",".join(md(f"\\p+{i}*\\k") for i in range(8)) + r"""
.endm
.macro N8 p,k
E8 """ + ",".join(md(f"\\p+{i}*\\k") for i in range(4)) + "," + ",".join(md(f"\\p+{i}*\\k+112") for i in range(4)) + r"""
.endm
.macro L8 p,k
E8 """ + ",".join(md(f"\\p+{i}*\\k") for i in range(3)) + r",%(448+\k-(\k/2)*2)," + ",".join(md(f"\\p+{i}*\\k+112") for i in range(3)) + r""",450
.endm
TABS:
.set tj, 0
.rept 14
.set ts, 0
.rept 28
.set tl, 0
.rept 64
.set tk, 16*tj+1+(tl&15)
M8 %(tk*(16*ts+8*(tl>>5))+112*((tl>>4)&1)), %(tk)
.set tl, tl+1
.endr
.set ts, ts+1
.endr
.set tj, tj+1
.endr
.set tj, 0
.rept 14
.set ts, 0
.rept 28
.set tl, 0
.rept 64
.set tk, 32*tj+(tl&31)
.if (ts==27)&&(tl>=32)
L8 %(tk*(8*ts+1+4*(tl>>5))), %(tk)
.else
N8 %(tk*(8*ts+1+4*(tl>>5))), %(tk)
.endif
.set tl, tl+1
.endr
.set ts, ts+1
.endr
.set tj, tj+1
.endr
.noaltmacro
"""
    def dwords(vals):
        o = ''
        w = [vals[i] | (vals[i + 1] << 16) for i in range(0, len(vals), 2)]
        for i in range(0, len(w), 8):
            o += '.long ' + ','.join(f'{x:#x}' for x in w[i:i + 8]) + '\n'
        return o
    v = []
    for blk in range(4):
        for h in range(2):
            for cs in range(2):
                for l in range(64):
                    for e in range(8):
                        row = 16 * blk + (l & 15); col = 32 * h + 16 * (e >> 2) + 4 * (l >> 4) + (e & 3)
                        v.append(bfbits(cosr(row * col - 16 * cs, 64)))
    s += dwords(v)
    v = []
    for ss in range(2):
        for l in range(64):
            for e in range(8):
                n1 = l & 31; row = 16 * ss + 8 * (e >> 2) + 4 * (l >> 5) + (e & 3)
                q = row >> 1; a = PAIRS[q][0]
                if q == 0: val = 1.0 if row == 0 else (-1.0) ** n1
                else: val = cosr(a * n1, 32) if row % 2 == 0 else cosr(a * n1 + 8, 32)
                v.append(bfbits(val))
    s += dwords(v)
    return s

STAMPS = False
def stamp_i(n): return [I(f"s_memtime s[{72+2*n}:{73+2*n}]")] if STAMPS else []
def stamp(P, n): P.add(stamp_i(n))
def stamp_out(P, kidx, n):
    if not STAMPS: return
    P.e("s_waitcnt vmcnt(0)")
    P.e(f"s_memtime s[{72+2*n}:{73+2*n}]\ns_memrealtime s[4:5]\ns_waitcnt lgkmcnt(0)")
    P.e(f"s_lshl_b32 {sA}, s2, 2\ns_add_u32 {sA}, {sA}, {sW}\ns_lshl_b32 {sA}, {sA}, 6\ns_add_u32 {sA}, {sA}, {STAMP + kidx * 65536}")
    P.e("v_mov_b32 v2, 0")
    for k in range(n + 1):
        P.e(f"v_mov_b32 v3, s{72+2*k}\nbuffer_store_dword v3, v2, {WS_}, {sA} offen offset:{4*k}")
    P.e(f"v_mov_b32 v3, s6\nbuffer_store_dword v3, v2, {WS_}, {sA} offen offset:56")
    P.e(f"v_mov_b32 v3, s4\nbuffer_store_dword v3, v2, {WS_}, {sA} offen offset:60")
def prologue(P, endlbl):
    if STAMPS: P.e("s_memrealtime s[6:7]")
    stamp(P, 0)
    P.e(f"s_cmp_ge_u32 s2, {NWG}")
    P.e(f"s_cbranch_scc1 {endlbl}")
    for srd, off in ((8, 0), (24, 8), (28, 16), (12, 32), (16, 40), (20, 48), (32, 56), (44, 64), (36, 72)):
        P.e(f"s_load_dwordx2 s[{srd}:{srd+1}], s[0:1], {off}")
    P.e("s_getpc_b64 s[40:41]")
    P.e("s_add_u32 s40, s40, TABS@rel32@lo+4")
    P.e("s_addc_u32 s41, s41, TABS@rel32@hi+12")
    for srd, size in ((8, 1835008), (12, 1605632), (16, 1605632), (20, 1605632), (24, 921600), (28, 921600), (32, 1835008), (36, WS_SIZE), (40, TAB_SIZE), (44, 256)):
        P.e(f"s_mov_b32 s{srd+2}, {size}")
        P.e(f"s_mov_b32 s{srd+3}, 0x20000")
    P.e(f"""
    v_lshrrev_b32 v2, 6, v0
    v_and_b32 v0, 63, v0
    v_readfirstlane_b32 {sW}, v2
    v_lshlrev_b32 {L16}, 4, v0
    s_and_b32 {sP}, s2, 7
    s_lshr_b32 {sK}, s2, 3
    s_and_b32 {sA}, {sK}, 3
    s_lshr_b32 {sE}, {sK}, 2
    s_lshr_b32 {sI}, {sP}, 1
    s_lshl_b32 {sI}, {sI}, 2
    s_add_u32 {sI}, {sI}, {sA}
    s_and_b32 {sJ}, {sP}, 1
    s_mul_i32 {sJ}, {sJ}, 7
    s_add_u32 {sJ}, {sJ}, {sE}
    s_lshl_b32 {sT}, {sP}, 2
    s_add_u32 {sT}, {sT}, {sA}
    s_lshl_b32 {sN2}, {sI}, 2
    s_add_u32 {sN2}, {sN2}, {sW}
    s_lshl_b32 {sW4K}, {sW}, 12
    s_mov_b32 {sMASK}, 0xffff0000
    s_mov_b32 {sONES}, 0x3f803f80
    """)

def dma(srd, voff, soff, m0expr, imm=0, tag=None, flags=''):
    o = []
    if m0expr is not None:
        o.append(I(f"s_add_u32 m0, {m0expr[0]}, {m0expr[1]}"))
    o.append(I(f"buffer_load_dwordx4 {voff}, {srd}, {soff} offen {'offset:%d ' % imm if imm else ''}{flags} lds", tag))
    return o

def dbslot(d, c):
    return ([9, 0, 1, 2, 3, 4, 5] if d == 0 else [6, 7, 8, 9, 0, 1, 2])[c]
SCR = 143360
def db_dma(d, c):
    base = dbslot(d, c) * SLOT
    koff = 64 * c * 3584 + 128 * d
    tag = f"db{d}_{c}"
    o = [I(f"s_add_u32 {sA}, {sDB0}, {koff}"), I(f"s_add_u32 {sB}, {sDB1}, {koff}")]
    g1 = [o[0]] + dma(W1_, 'v4', sA, (sW4K, base), 0, tag)
    g2 = [o[1]] + dma(W1_, 'v4', sB, None, 1024, tag)
    g3 = dma(W3_, 'v4', sA, (sW4K, base + 2048), 0, tag)
    g4 = dma(W3_, 'v4', sB, None, 1024, tag)
    return [g1, g2, g3, g4]
def db_tr(d, s, m, fb, dst):
    c, q = s >> 2, s & 3
    off = dbslot(d, c) * SLOT + q * 4096 + m * 2048
    win, off = off >> 16, off & 0xffff
    base = f"v{11 + 2 * win + fb}"
    return [I(f"ds_read_b64_tr_b16 {ar(dst, 2)}, {base} offset:{off}"), I(f"ds_read_b64_tr_b16 {ar(dst + 2, 2)}, {base} offset:{off + 512}")]

def epilogue(G, U, fbg):
    o = []
    for half in range(2):
        for quad in range(2):
            r = [8 * half + 4 * quad + k for k in range(4)]
            o += [f"v_mul_f32 v{U+k}, v{G+k}, v{U+k}" for k in r]
            o += [f"v_mul_f32 v{G+k}, v20, v{G+k}" for k in r]
            o += [f"v_exp_f32 v{G+k}, v{G+k}" for k in r]
            o += [f"v_fma_f32 v{G+k}, v{G+k}, v21, v21" for k in r]
            o += [f"v_rcp_f32 v{G+k}, v{G+k}" for k in r]
            o += [f"v_mul_f32 v{U+k}, v{G+k}, v{U+k}" for k in r]
            o += [f"v_cvt_pk_bf16_f32 v{G+8*half+2*quad+z}, v{U+r[2*z]}, v{U+r[2*z+1]}" for z in range(2)]
        st = 2 * fbg + half
        o.append(I(f"buffer_store_dwordx4 {vr(G+8*half, 4)}, {L16}, {WS_}, {sH0 if st < 4 else sH1} offen offset:{(st & 3) * 1024} sc1", f"h{fbg}"))
    return o

def center(s):
    o = []
    for k in range(4):
        r = XF + 4 * s + k; t = 24 + 2 * (k & 1)
        o += [f"v_lshlrev_b32 v{t}, 16, v{r}", f"v_and_b32 v{t+1}, {sMASK}, v{r}",
              f"v_add_f32 v{t}, v19, v{t}", f"v_add_f32 v{t+1}, v19, v{t+1}", f"v_cvt_pk_bf16_f32 v{r}, v{t}, v{t+1}"]
    return o

def w2_dma(u):
    s = 8 * (u % 14) + 4 * (u // 14)
    base = (3 + (u >> 1) % 3) * SLOT + (u & 1) * 2048
    tag = f"w2_{u}"
    return [[I(f"s_add_u32 {sC}, {sW2A}, {s * 16 * 896}")] + dma(W2_, 'v5', sC, (sW4K, base), 0, tag),
            [I(f"s_add_u32 {sD}, {sW2B}, {s * 16 * 896}")] + dma(W2_, 'v5', sD, None, 1024, tag)]
def w2_tr(u):
    off = ((u >> 1) % 3) * SLOT + (u & 1) * 2048
    o = []
    for dt in range(2):
        o += [I(f"ds_read_b64_tr_b16 {ar(8*u+4*dt, 2)}, v{17+dt} offset:{off}", f"w2r_{u}"),
              I(f"ds_read_b64_tr_b16 {ar(8*u+4*dt+2, 2)}, v{17+dt} offset:{off+1024}", f"w2r_{u}")]
    return o
def w2_setup(P):
    P.e(f"""
    v_lshrrev_b32 v23, 3, v0
    v_mul_u32_u24 v5, 896, v23
    v_lshlrev_b32 v23, 1, v23
    v_and_b32 v23, 4, v23
    v_and_b32 v24, 7, v0
    v_xor_b32 v23, v23, v24
    v_lshl_add_u32 v5, v23, 4, v5
    s_mul_i32 {sW2A}, {sW}, {16*896}
    s_lshl_b32 {sA}, {sE}, 7
    s_add_u32 {sW2A}, {sW2A}, {sA}
    s_add_u32 {sW2B}, {sW2A}, {8*896-1024}
    """)
    P.e(f"""
    v_lshrrev_b32 v23, 5, v0
    v_lshlrev_b32 v23, 9, v23
    v_bfe_u32 v24, v0, 2, 2
    v_lshl_add_u32 v23, v24, 7, v23
    v_bfe_u32 v25, v0, 4, 1
    v_lshl_add_u32 v23, v25, 5, v23
    v_and_b32 v25, 3, v0
    v_lshl_add_u32 v23, v25, 3, v23
    v_bfe_u32 v24, v0, 3, 1
    s_and_b32 {sA}, {sW}, 1
    v_xor_b32 v24, {sA}, v24
    v_lshl_add_u32 v23, v24, 6, v23
    s_add_u32 {sA}, {sW4K}, {3*SLOT}
    v_add_u32 v17, {sA}, v23
    v_xor_b32 v18, 64, v17
    """)

def phase_g1(P, fused, rep):
    P.e(f"""
    v_lshrrev_b32 v23, 3, v0
    v_and_b32 v24, 7, v0
    v_lshrrev_b32 v25, 1, v23
    v_xor_b32 v26, v24, v25
    v_mul_u32_u24 v2, 57344, v23
    v_lshl_add_u32 v2, v26, 4, v2
    v_xor_b32 v3, 64, v2
    v_mul_u32_u24 v4, 3584, v23
    v_and_b32 v25, 1, v25
    v_lshlrev_b32 v25, 2, v25
    v_xor_b32 v26, v24, v25
    v_lshl_add_u32 v4, v26, 4, v4
    s_mul_i32 {sDB0}, {sW}, {16*3584}
    s_lshl_b32 {sA}, {sJ}, 8
    s_add_u32 {sDB0}, {sDB0}, {sA}
    s_add_u32 {sDB1}, {sDB0}, {8*3584-1024}
    s_mul_i32 {sC}, {sJ}, 28672
    s_mul_i32 {sA}, {sW}, 7168
    s_add_u32 {sC}, {sC}, {sA}
    s_add_u32 {sD}, {sA}, {7*SLOT}
    s_waitcnt lgkmcnt(0)
    """)
    for u in range(7):
        P.add([I(f"s_add_u32 {sA}, {sC}, {FT + u*1024}")] + dma(TAB_, L16, sA, (sD, u * 1024), 0, 'F'))
    P.e(f"s_mul_i32 {sC}, {sN2}, 896")
    for c in range(7):
        for rb in range(4):
            P.add([I(f"s_add_u32 {sA}, {sC}, {rb*(8*57344-1024) + c*128}")] + dma(X_, 'v3' if rb & 1 else 'v2', sA, (sW4K, c * SLOT) if rb == 0 else None, rb * 1024, f'x{c}'))
    P.add(db_dma(0, 0))
    P.e(f"""
    v_and_b32 v23, 31, v0
    v_lshlrev_b32 v24, 7, v23
    v_add_u32 v24, {sW4K}, v24
    v_bfe_u32 v25, v0, 1, 3
    v_lshrrev_b32 v26, 5, v0
    v_xor_b32 v25, v25, v26
    v_lshl_add_u32 v6, v25, 4, v24
    v_xor_b32 v7, 32, v6
    v_xor_b32 v8, 64, v6
    v_xor_b32 v9, 0x60, v6
    v_add_u32 v10, {7*SLOT}, {L16}
    """)
    P.e(f"""
    v_lshrrev_b32 v23, 5, v0
    v_lshlrev_b32 v23, 10, v23
    v_bfe_u32 v24, v0, 2, 2
    v_lshl_add_u32 v23, v24, 7, v23
    v_bfe_u32 v25, v0, 4, 1
    v_lshl_add_u32 v23, v25, 5, v23
    v_and_b32 v25, 3, v0
    v_lshl_add_u32 v23, v25, 3, v23
    v_bfe_u32 v24, v0, 3, 1
    v_lshl_add_u32 v11, v24, 6, v23
    v_xor_b32 v12, 64, v11
    v_add_u32 v13, 0x10000, v11
    v_add_u32 v14, 0x10000, v12
    v_add_u32 v15, 0x20000, v11
    v_add_u32 v16, 0x20000, v12
    s_mul_i32 {sH0}, {sN2}, {112*1024}
    s_lshl_b32 {sA}, {sJ}, 13
    s_add_u32 {sH0}, {sH0}, {sA}
    s_add_u32 {sH0}, {sH0}, {HBUF}
    s_add_u32 {sH1}, {sH0}, 4096
    """)
    if fused: w2_setup(P)
    P.e(f"""
    v_bfe_u32 v23, v0, 2, 3
    v_lshlrev_b32 v22, 13, v23
    v_lshrrev_b32 v24, 5, v0
    v_lshl_add_u32 v22, v24, 6, v22
    v_and_b32 v25, 3, v0
    v_lshl_add_u32 v22, v25, 4, v22
    v_and_b32 v25, 1, v0
    v_lshl_add_u32 v23, v23, 1, v25
    v_sub_u32 v25, 32, v23
    v_cmp_eq_u32 vcc, 0, v23
    v_cndmask_b32 v25, v25, 16, vcc
    v_and_b32 v26, 2, v0
    v_cmp_eq_u32 vcc, 0, v26
    v_cndmask_b32 v23, v25, v23, vcc
    v_cvt_f32_u32 v23, v23
    v_lshlrev_b32 v24, 8, v24
    v_add_u32 v24, {sN2}, v24
    v_cvt_f32_u32 v24, v24
    v_mul_f32 v24, v23, v24
    v_mul_f32 v24, {f32bits(1/2048):#x}, v24
    v_mul_f32 v23, {f32bits(1/32):#x}, v23
    """)
    for ss in range(2):
        for z in range(4):
            for y in range(2):
                e = 2 * z + y
                n1off = 16 * ss + 8 * (e >> 2) + (e & 3)
                P.e(f"s_mov_b32 {sA}, {f32bits(float(n1off)):#x}")
                P.e(f"v_fma_f32 v{26+y}, v23, {sA}, v24")
                P.e(f"v_fract_f32 v{26+y}, v{26+y}")
            P.e("v_cos_f32 v28, v26\nv_cos_f32 v29, v27\nv_sin_f32 v30, v26\nv_sin_f32 v31, v27")
            P.e("v_cvt_pk_bf16_f32 v28, v28, v29\nv_cvt_pk_bf16_f32 v30, v30, v31")
            P.e(f"v_accvgpr_write_b32 a{4*ss+z}, v28\nv_accvgpr_write_b32 a{8+4*ss+z}, v30")
    P.e("v_mov_b32 v28, 0\nv_mov_b32 v29, 0\nv_mov_b32 v30, 0\nv_mov_b32 v31, 0")
    stamp(P, 1)
    P.waitvm('F'); P.e("s_barrier")
    stamp(P, 2)
    DA = ACC[4]
    def rd(c):
        o = []
        for q in range(4):
            s = 4 * c + q
            o.append(I(f"ds_read_b128 {vr(XF+4*s, 4)}, v{6+q} offset:{(c & 3) * SLOT}", f"xr{c}"))
            o.append(I(f"ds_read_b128 {ar(ABUF+16*(c&1)+4*q, 4)}, v10 offset:{s*1024}"))
        return o
    P.waitvm('x0'); P.add(rd(0))
    for c in range(7):
        P.waitlg(f'xr{c}')
        P.add(db_dma(0, c + 1) if c < 6 else db_dma(1, 0))
        for q in range(4):
            s = 4 * c + q
            P.e(f"v_mfma_f32_32x32x16_bf16 {vr(DA,16)}, {vr(XF+4*s,4)}, {ar(ABUF+16*(c&1)+4*q,4)}, {vr(DA,16) if s else 0}")
        if c == 3:
            for q in range(4): P.e(f"v_add_u32 v{6+q}, 0x10000, v{6+q}")
        if c < 6:
            P.waitvm(f'x{c+1}'); P.add(rd(c + 1))
        for r in range(16):
            x = XF + 16 * c + r
            P.e(f"v_dot2c_f32_bf16 v{28+(r&1)}, {sONES}, v{x}")
            P.e(f"v_dot2c_f32_bf16 v{30+(r&1)}, v{x}, v{x}")
    stamp(P, 3)
    P.waitvm('db0_0'); P.e("s_barrier")
    P.add(db_dma(1, 1))
    P.e(f"""
    s_nop 2
    v_add_f32 v28, v28, v29
    v_add_f32 v30, v30, v31
    v_mov_b32 v29, v28
    v_mov_b32 v31, v30
    v_permlane32_swap_b32 v28, v29
    v_permlane32_swap_b32 v30, v31
    v_add_f32 v28, v28, v29
    v_add_f32 v30, v30, v31
    v_mul_f32 v19, {f32bits(-1/448):#x}, v28
    v_mul_f32 v30, {f32bits(1/448):#x}, v30
    v_fma_f32 v30, -v19, v19, v30
    v_max_f32 v30, 0, v30
    v_add_f32 v21, {f32bits(1e-5):#x}, v30
    v_rsq_f32 v29, v21
    v_and_b32 v23, 31, v0
    s_lshl_b32 {sA}, {sW}, 7
    s_add_u32 {sA}, {sA}, {SCR}
    v_lshl_add_u32 v23, v23, 2, {sA}
    ds_write_b32 v23, v29
    v_mul_f32 v20, {f32bits(-math.log2(math.e)):#x}, v29
    v_lshrrev_b32 v23, 5, v0
    v_lshl_add_u32 v23, v23, 4, {sA}
    s_waitcnt lgkmcnt(0)
    """)
    for q in range(4):
        P.e(f"ds_read_b128 {vr(ACC[5]+4*q,4)}, v23 offset:{32*q}", 'rs')
    for tile, (m, fb) in enumerate(((0, 0), (1, 0), (0, 1), (1, 1))):
        P.add(db_tr(0, 0, m, fb, ABUF + 4 * tile))
    P.add(center(0))
    stamp(P, 4)
    tiles = ((0, 0, ACC[0]), (1, 0, ACC[2]), (0, 1, ACC[1]), (1, 1, ACC[3]))
    spine = []; idx = {}
    SB = 3
    for s in range(28):
        for t, (m, fb, acc) in enumerate(tiles):
            idx[s, t] = len(spine)
            spine.append(f"v_mfma_f32_32x32x16_bf16 {vr(acc,16)}, {ar(ABUF+16*(s&1)+4*t,4)}, {vr(XF+4*s,4)}, {vr(acc,16) if s else 0}")
        if s == SB:
            idx['B'] = len(spine)
            for ss in range(2):
                spine.append(f"v_mfma_f32_32x32x16_bf16 {vr(ACC[5],16)}, {vr(240+4*ss,4)}, {ar(4*ss,4)}, {vr(ACC[5],16) if ss else 0}")
                spine.append(f"v_mfma_f32_32x32x16_bf16 {vr(ACC[4],16)}, {vr(240+4*ss,4)}, {ar(8+4*ss,4)}, {vr(ACC[4],16) if ss else 0}")
    n0 = len(spine)
    trs = []; dmas = []
    for s in range(1, 28):
        if s % 4 == 0:
            c = s // 4
            g = idx[s - 1, 0] - 1
            trs.append((g, g, [WaitVM(f'db0_{c}'), I('s_barrier')]))
            nxt = {1: (1, 2), 2: (1, 3), 3: (1, 4), 4: (1, 5), 5: (1, 6)}.get(c)
            if nxt:
                for k, grp in enumerate(db_dma(*nxt)): dmas.append((g + 1, g + 4 + 3 * k, grp))
        for t, (m, fb, acc) in enumerate(tiles):
            lo = idx[s - 2, t] if s >= 2 else -1
            for x in db_tr(0, s, m, fb, ABUF + 16 * (s & 1) + 4 * t): trs.append((lo, idx[s - 1, t], x))
    cen = []
    for s in range(1, 28):
        for x in center(s): cen.append((idx[max(s - 2, 0), 0], idx[s, 0] - 2, x))
    stb = []
    b0 = idx['B']
    for r in range(16): stb.append((0, b0 - 2, f"v_mul_f32 v{ACC[4]+r}, v{ACC[5]+r}, v{ACC[4]+r}"))
    for z in range(8): stb.append((0, b0 - 2, f"v_cvt_pk_bf16_f32 v{240+z}, v{ACC[4]+2*z}, v{ACC[4]+2*z+1}"))
    Pp, Q = ACC[5], ACC[4]
    lo, hi = b0 + 6, b0 + 30
    for r in range(8):
        stb.append((lo, hi, f"v_add_f32 v{Pp+r}, v{Pp+r}, v{Q+8+r}"))
        stb.append((lo, hi, f"v_sub_f32 v{Pp+8+r}, v{Pp+8+r}, v{Q+r}"))
    for sub in range(2):
        o = 240 + 4 * sub
        for z in range(2):
            stb.append((lo, hi, f"v_cvt_pk_bf16_f32 v{o+z}, v{Pp+4*sub+2*z}, v{Pp+4*sub+2*z+1}"))
            stb.append((lo, hi, f"v_cvt_pk_bf16_f32 v{o+2+z}, v{Pp+8+4*sub+2*z}, v{Pp+8+4*sub+2*z+1}"))
    stb.append((lo, hi, [f"s_lshl_b32 {sC}, {sJ}, 17", f"s_lshl_b32 {sD}, {sN2}, 7"]))
    stb.append((lo, hi, [f"s_add_u32 {sC}, {sC}, {sD}", f"s_add_u32 {sC}, {sC}, {YBUF}", f"s_add_u32 {sD}, {sC}, 65536"]))
    for sub in range(2):
        o = 240 + 4 * sub
        stb.append((lo, hi, f"v_permlane32_swap_b32 v{o}, v{o+2}"))
        stb.append((lo, hi, f"v_permlane32_swap_b32 v{o+1}, v{o+3}"))
    for sub in range(2):
        stb.append((lo, hi, I(f"buffer_store_dwordx4 {vr(240+4*sub,4)}, v22, {WS_}, {sD if sub else sC} offen sc1", 'Y')))
    for half in range(2):
        accs = (ACC[4], ACC[5]) if half == 0 else (ACC[0], ACC[2])
        for s in range(28):
            for m in range(2):
                k = 28 * half + s
                idx['p1', k, m] = len(spine)
                spine.append(f"v_mfma_f32_32x32x16_bf16 {vr(accs[m],16)}, {ar(ABUF+8*(k&3)+4*m,4)}, {vr(XF+4*s,4)}, {vr(accs[m],16) if s else 0}")
    for k in range(56):
        half, s = divmod(k, 28)
        if k == 0:
            g = idx[27, 0] - 1
            trs.append((g, g, [WaitVM([f'db1_{c}' for c in range(5)]), I('s_barrier')]))
        if k == 18:
            g = idx['p1', 14, 0]
            trs.append((g, g, [WaitVM(['db1_5', 'db1_6']), I('s_barrier')]))
        for m in range(2):
            if k >= 4: lo = idx['p1', k - 4, m]
            else: lo = idx[26 + (k >> 1), 2 * (k & 1) + m]
            dl = idx['p1', k, m] - 4
            lo = min(lo, dl) if k >= 4 else lo
            for x in db_tr(1, s, m, half, ABUF + 8 * (k & 3) + 4 * m): trs.append((lo, max(dl, lo), x))
    epi = []
    for x in epilogue(ACC[0], ACC[2], 0): epi.append((n0 + 1, idx['p1', 28, 0] - 2, x))
    for x in epilogue(ACC[1], ACC[3], 1): epi.append((n0 + 1, len(spine) - 30, x))
    for x in epilogue(ACC[4], ACC[5], 2): epi.append((idx['p1', 28, 0] + 2, len(spine) - 1, x))
    stm = [(56, 56, stamp_i(5)), (n0 - 1, n0 - 1, stamp_i(6)), (n0 + 55, n0 + 55, stamp_i(7))] if STAMPS else []
    streams = [trs, cen, stb, dmas, epi, stm]
    P.add(weave(spine, streams, cap=5, report=rep))
    stamp(P, 8)
    P.add(epilogue(ACC[0], ACC[2], 3))
    stamp(P, 9)

def phase_c(P, fused):
    YL, ZL, TL = 0, 8192, 16384
    CC, SS, NS = 32, 48, 64
    WRr, WIr = 80, 88
    YF = 96
    XA = 112
    ZF = 128
    VA = 160
    CO = 176
    P.e(f"""
    v_lshrrev_b32 v23, 3, v0
    v_bfe_u32 v24, v0, 4, 2
    v_lshlrev_b32 v24, 1, v24
    v_and_b32 v25, 7, v0
    v_xor_b32 v24, v24, v25
    v_lshlrev_b32 v2, 7, v23
    v_lshl_add_u32 v2, v24, 4, v2
    s_lshl_b32 {sA}, {sK}, 3
    s_add_u32 {sA}, {sA}, {sP}
    s_lshl_b32 {sA}, {sA}, 13
    s_lshl_b32 {sB}, {sW}, 11
    s_add_u32 {sA}, {sA}, {sB}
    s_add_u32 {sA}, {sA}, {YBUF}
    """)
    if not fused: P.e("s_waitcnt lgkmcnt(0)")
    P.add(dma(WS_, 'v2', sA, (sB, YL), 0, 'Yl', 'sc1'))
    P.add(dma(WS_, 'v2', sA, None, 1024, 'Yl', 'sc1'))
    for tt in range(2):
        P.e(f"s_xor_b32 {sA}, {sW}, {tt}\ns_lshl_b32 {sA}, {sA}, 12\ns_add_u32 {sA}, {sA}, {CT}")
        for s in range(2):
            P.e(f"buffer_load_dwordx4 {vr(CC+8*tt+4*s,4)}, {L16}, {TAB_}, {sA} offen offset:{2048*s}")
            P.e(f"buffer_load_dwordx4 {vr(SS+8*tt+4*s,4)}, {L16}, {TAB_}, {sA} offen offset:{2048*s+1024}")
    P.e(f"""
    v_bfe_u32 v23, v0, 3, 1
    s_lshl_b32 {sA}, {sP}, 1
    v_add_u32 v23, {sA}, v23
    v_sub_u32 v24, 32, v23
    v_cmp_eq_u32 vcc, 0, v23
    v_cndmask_b32 v24, v24, 16, vcc
    s_and_b32 {sA}, {sW}, 1
    s_cmp_eq_u32 {sA}, 0
    s_cselect_b64 vcc, -1, 0
    v_cndmask_b32 v23, v24, v23, vcc
    v_lshrrev_b32 v24, 4, v0
    v_lshl_add_u32 v23, v24, 7, v23
    v_mul_u32_u24 v3, 450, v23
    v_and_b32 v24, 7, v0
    v_lshl_add_u32 v3, v24, 1, v3
    """)
    for r in range(16): P.e(f"v_mov_b32 v{WRr+r}, 0")
    for tt in range(2):
        P.e(f"s_xor_b32 {sB}, {sW}, {tt}\ns_mul_i32 {sB}, {sB}, {16*32*450}\ns_lshl_b32 {sC}, {sK}, 4\ns_add_u32 {sB}, {sB}, {sC}")
        for r in range(4):
            P.e(f"s_add_u32 {sA}, {sB}, {r*14400+2}")
            P.e(f"buffer_load_short_d16_hi v{WRr+4*tt+r}, v3, {WR_}, {sA} offen")
            P.e(f"buffer_load_short_d16_hi v{WIr+4*tt+r}, v3, {WI_}, {sA} offen")
    sc = 2.0 / (2048 * 448)
    P.e(f"""
    v_lshrrev_b32 v23, 5, v0
    s_lshl_b32 {sA}, {sP}, 1
    v_add_u32 v23, {sA}, v23
    v_sub_u32 v24, 32, v23
    v_cmp_eq_u32 vcc, 0, v23
    v_cndmask_b32 v24, v24, 16, vcc
    v_and_b32 v25, 15, v0
    s_lshl_b32 {sA}, {sW}, 4
    v_add_u32 v25, {sA}, v25
    v_mul_u32_u24 v23, v23, v25
    v_mul_u32_u24 v24, v24, v25
    v_cvt_f32_u32 v23, v23
    v_cvt_f32_u32 v24, v24
    v_mul_f32 v23, {f32bits(1/2048):#x}, v23
    v_mul_f32 v24, {f32bits(1/2048):#x}, v24
    v_cos_f32 v{CO}, v23
    v_sin_f32 v{CO+1}, v23
    v_cos_f32 v26, v24
    v_sin_f32 v27, v24
    v_mul_f32 v{CO}, {f32bits(sc):#x}, v{CO}
    v_mul_f32 v{CO+1}, {f32bits(sc):#x}, v{CO+1}
    v_mul_f32 v26, {f32bits(sc):#x}, v26
    v_mul_f32 v27, {f32bits(sc):#x}, v27
    v_sub_f32 v28, 0, v{CO}
    v_sub_f32 v29, 0, v27
    v_cndmask_b32 v{CO+2}, v26, 0, vcc
    v_cndmask_b32 v{CO+3}, v27, 0, vcc
    v_cndmask_b32 v{CO+4}, v{CO+1}, 0, vcc
    v_cndmask_b32 v{CO+5}, v28, 0, vcc
    v_cndmask_b32 v{CO+6}, v29, v26, vcc
    v_cndmask_b32 v{CO+7}, v26, v27, vcc
    """)
    P.e(f"""
    v_lshrrev_b32 v23, 2, v0
    v_lshlrev_b32 v4, 7, v23
    v_bfe_u32 v24, v0, 3, 2
    s_and_b32 {sA}, {sW}, 1
    v_xor_b32 v24, {sA}, v24
    v_lshl_add_u32 v4, v24, 5, v4
    v_and_b32 v24, 3, v0
    v_lshl_add_u32 v4, v24, 3, v4
    v_xor_b32 v9, 64, v4
    s_lshl_b32 {sB}, {sA}, 12
    s_lshr_b32 {sC}, {sW}, 1
    s_lshl_b32 {sC}, {sC}, 11
    s_add_u32 {sB}, {sB}, {sC}
    s_lshl_b32 {sA}, {sA}, 3
    s_add_u32 {sB}, {sB}, {sA}
    s_add_u32 {sB}, {sB}, {ZL}
    v_add_u32 v5, {sB}, {L16}
    v_xor_b32 v10, 8, v5
    v_and_b32 v23, 15, v0
    v_bfe_u32 v24, v0, 4, 1
    s_lshr_b32 {sA}, {sP}, 2
    v_xor_b32 v24, {sA}, v24
    v_lshlrev_b32 v24, 2, v24
    v_lshrrev_b32 v25, 5, v0
    v_lshl_add_u32 v24, v25, 1, v24
    v_and_b32 v25, 7, v0
    v_xor_b32 v24, v24, v25
    v_lshlrev_b32 v6, 7, v23
    v_lshl_add_u32 v6, v24, 4, v6
    s_lshl_b32 {sA}, {sW}, 11
    s_add_u32 {sA}, {sA}, {TL}
    v_add_u32 v6, {sA}, v6
    v_xor_b32 v11, 16, v6
    v_lshrrev_b32 v23, 3, v0
    v_xor_b32 v24, v23, v25
    v_lshlrev_b32 v7, 7, v23
    v_lshl_add_u32 v7, v24, 4, v7
    v_add_u32 v7, {sA}, v7
    v_mul_u32_u24 v8, 28672, v23
    v_lshl_add_u32 v8, v25, 4, v8
    """)
    for r in range(16): P.e(f"v_xor_b32 v{NS+r}, 0x80008000, v{SS+r}")
    stamp(P, 1)
    P.waitvm('Yl'); P.e("s_barrier")
    stamp(P, 2)
    for part in range(2):
        for s in range(2):
            for t in range(2):
                P.e(f"ds_read_b64_tr_b16 {vr(YF+8*part+4*s+2*t,2)}, {'v9' if part else 'v4'} offset:{YL+(32*s+16*t)*128}")
    M = "v_mfma_f32_16x16x32_bf16"
    for k4 in range(4):
        s, term = k4 >> 1, k4 & 1
        for part in range(2):
            for tt in range(2):
                acc = XA + 8 * part + 4 * tt
                if term == 0: A, B = CC + 8 * tt + 4 * s, YF + 8 * part + 4 * s
                else: A, B = (NS if part else SS) + 8 * tt + 4 * s, YF + 8 * (1 - part) + 4 * s
                P.e(f"{M} {vr(acc,4)}, {vr(A,4)}, {vr(B,4)}, {vr(acc,4) if k4 else 0}")
    for r in range(8):
        P.e(f"v_mul_f32 v{ZF+r}, v{XA+r}, v{WRr+r}\nv_mul_f32 v{ZF+8+r}, v{XA+r}, v{WIr+r}")
    for r in range(8):
        P.e(f"v_fma_f32 v{ZF+r}, -v{XA+8+r}, v{WIr+r}, v{ZF+r}\nv_fma_f32 v{ZF+8+r}, v{XA+8+r}, v{WRr+r}, v{ZF+8+r}")
    for z in range(8): P.e(f"v_cvt_pk_bf16_f32 v{24+z}, v{ZF+2*z}, v{ZF+2*z+1}")
    for part in range(2):
        P.e(f"ds_write_b64 v5, {vr(24+4*part,2)} offset:{1024*part}\nds_write_b64 v10, {vr(26+4*part,2)} offset:{1024*part}")
    stamp(P, 3)
    P.e("s_waitcnt lgkmcnt(0)\ns_barrier")
    for f in range(8): P.e(f"ds_read_b128 {vr(ZF+4*f,4)}, {L16} offset:{ZL+1024*f}")
    for k4 in range(4):
        s, term = k4 >> 1, k4 & 1
        for c in range(2):
            for part in range(2):
                acc = VA + 8 * c + 4 * part
                A = ZF + 16 * c + 8 * s + 4 * term
                B = ((CC, NS), (SS, CC))[part][term] + 4 * s
                P.e(f"{M} {vr(acc,4)}, {vr(A,4)}, {vr(B,4)}, {vr(acc,4) if k4 else 0}")
    stamp(P, 4)
    O = 96
    for row in range(2):
        c1, c2 = CO + 4 * row, CO + 4 * row + 2
        for r in range(4):
            P.e(f"v_mul_f32 v{O+8*row+r}, v{c1}, v{VA+r}\nv_mul_f32 v{O+8*row+4+r}, v{c1}, v{VA+4+r}")
        for r in range(4):
            P.e(f"v_fma_f32 v{O+8*row+r}, -v{c1+1}, v{VA+4+r}, v{O+8*row+r}\nv_fma_f32 v{O+8*row+4+r}, v{c1+1}, v{VA+r}, v{O+8*row+4+r}")
        for r in range(4):
            P.e(f"v_fma_f32 v{O+8*row+r}, v{c2}, v{VA+8+r}, v{O+8*row+r}\nv_fma_f32 v{O+8*row+4+r}, v{c2}, v{VA+12+r}, v{O+8*row+4+r}")
        for r in range(4):
            P.e(f"v_fma_f32 v{O+8*row+r}, -v{c2+1}, v{VA+12+r}, v{O+8*row+r}\nv_fma_f32 v{O+8*row+4+r}, v{c2+1}, v{VA+8+r}, v{O+8*row+4+r}")
        for z in range(4): P.e(f"v_cvt_pk_bf16_f32 v{24+4*row+z}, v{O+8*row+2*z}, v{O+8*row+2*z+1}")
        P.e(f"ds_write_b128 {'v11' if row else 'v6'}, {vr(24+4*row,4)}")
    P.e(f"""
    s_lshl_b32 {sA}, {sW}, 4
    s_mul_i32 {sA}, {sA}, 28672
    s_lshl_b32 {sB}, {sK}, 10
    s_add_u32 {sA}, {sA}, {sB}
    s_lshl_b32 {sB}, {sP}, 7
    s_add_u32 {sA}, {sA}, {sB}
    s_add_u32 {sA}, {sA}, {TBUF}
    s_add_u32 {sB}, {sA}, {8*28672}
    s_waitcnt lgkmcnt(0)
    ds_read_b128 v[24:27], v7
    ds_read_b128 v[28:31], v7 offset:1024
    """)
    P.e(f"buffer_store_dwordx4 v[24:27], v8, {WS_}, {sA} offen sc1", 'T')
    P.e(f"buffer_store_dwordx4 v[28:31], v8, {WS_}, {sB} offen sc1", 'T')

IMG, TLD, IFL = 0, 49152, 106496
def if_dma():
    return [[I(f"s_add_u32 {sC}, {sA}, {u*1024}")] + dma(TAB_, L16, sC, (sB, u * 1024), 0, 'iF') for u in range(14)]
def phase_g2(P, fused, rep):
    HB, HD = 32, 8
    GA = [144 + 16 * i for i in range(4)]
    D1, SA = 208, 224
    XR, XU, DPF = 96, 104, 120
    if not fused:
        w2_setup(P)
        P.e("s_waitcnt lgkmcnt(0)")
        for u in range(6): P.add(w2_dma(u))
        for u in range(28):
            P.waitvm(f'w2_{u}'); P.add(w2_tr(u))
            if u + 6 < 28:
                P.waitlg(f'w2r_{u}'); P.add(w2_dma(u + 6))
        P.e("s_waitcnt lgkmcnt(0)\ns_barrier")
        P.e(f"s_mul_i32 {sA}, {sE}, 57344\ns_mul_i32 {sB}, {sW}, 14336\ns_add_u32 {sA}, {sA}, {sB}\ns_add_u32 {sA}, {sA}, {IFT}\ns_add_u32 {sB}, {sB}, {IFL}")
        stamp(P, 1)
        P.add(if_dma())
    P.e(f"""
    s_lshr_b32 {sA}, {sW}, 1
    s_lshl_b32 {sB}, {sT}, 1
    s_add_u32 {sN2}, {sA}, {sB}
    s_mul_i32 {sH0}, {sN2}, {112*1024}
    s_xor_b32 {sA}, {sN2}, 1
    s_mul_i32 {sH1}, {sA}, {112*1024}
    s_lshl_b32 {sA}, {sW}, 10
    s_add_u32 {sA}, {sA}, {HBUF}
    s_add_u32 {sH0}, {sH0}, {sA}
    s_add_u32 {sH1}, {sH1}, {sA}
    """)
    def hload(u):
        s = 8 * (u % 14) + 4 * (u // 14)
        b = HB + 8 * (u % HD)
        return [[I(f"s_add_u32 {sA}, {sH0}, {s*1024}"), I(f"buffer_load_dwordx4 {vr(b,4)}, {L16}, {WS_}, {sA} offen sc1")],
                [I(f"s_add_u32 {sB}, {sH1}, {s*1024}"), I(f"buffer_load_dwordx4 {vr(b+4,4)}, {L16}, {WS_}, {sB} offen sc1")]]
    for u in range(HD): P.add(hload(u))
    P.e(f"""
    v_and_b32 v23, 31, v0
    v_mul_u32_u24 v2, 57344, v23
    v_lshrrev_b32 v24, 5, v0
    v_lshl_add_u32 v2, v24, 4, v2
    s_mul_i32 {sDB0}, {sN2}, 896
    s_lshl_b32 {sA}, {sE}, 7
    s_add_u32 {sDB0}, {sDB0}, {sA}
    s_and_b32 {sA}, {sW}, 1
    s_lshl_b32 {sB}, {sA}, 6
    s_add_u32 {sDB0}, {sDB0}, {sB}
    buffer_load_dwordx4 {vr(XR,4)}, v2, {X_}, {sDB0} offen
    buffer_load_dwordx4 {vr(XR+4,4)}, v2, {X_}, {sDB0} offen offset:32
    s_mov_b32 {sB}, {DP}
    buffer_load_dwordx4 {vr(DPF,4)}, {L16}, {TAB_}, {sB} offen
    buffer_load_dwordx4 {vr(DPF+4,4)}, {L16}, {TAB_}, {sB} offen offset:1024
    s_mul_i32 {sA}, {sA}, 28672
    s_add_u32 {sA}, {sA}, {IFL}
    v_add_u32 v3, {sA}, {L16}
    v_bfe_u32 v25, v0, 2, 3
    v_lshlrev_b32 v4, 7, v25
    v_bfe_u32 v25, v0, 4, 1
    v_xor_b32 v25, v25, v24
    v_lshl_add_u32 v4, v25, 6, v4
    v_and_b32 v25, 3, v0
    v_lshl_add_u32 v4, v25, 4, v4
    s_lshr_b32 {sA}, {sW}, 1
    s_mul_i32 {sA}, {sA}, 28672
    s_add_u32 {sA}, {sA}, {TLD}
    v_add_u32 v4, {sA}, v4
    """)
    for lam in range(1, 4):
        P.e(f"s_xor_b32 {sA}, {sW}, {lam}\ns_mul_i32 {sA}, {sA}, 12288\ns_add_u32 {sA}, {sA}, {IMG+(lam-1)*4096}\nv_add_u32 v{4+lam}, {sA}, {L16}")
    P.e(f"s_mul_i32 {sA}, {sW}, 12288\ns_add_u32 {sA}, {sA}, {IMG}\nv_add_u32 v8, {sA}, {L16}")
    P.e(f"s_mul_i32 {sW2A}, {sT}, 57344\ns_mul_i32 {sW2B}, {sW}, 14336\ns_add_u32 {sW2A}, {sW2A}, {sW2B}\ns_add_u32 {sW2A}, {sW2A}, {TBUF}\ns_add_u32 {sW2B}, {sW2B}, {TLD}")
    stamp(P, 2)
    M = "v_mfma_f32_32x32x16_bf16"
    spine = []
    for u in range(28):
        for lam in range(4):
            th, dt = lam >> 1, lam & 1
            spine.append(f"{M} {vr(GA[lam],16)}, {ar(8*u+4*dt,4)}, {vr(HB+8*(u%HD)+4*th,4)}, {vr(GA[lam],16) if u else 0}")
    n0 = len(spine)
    for z in range(28):
        spine.append(f"{M} {vr(D1,16)}, {ar(112+4*z,4)}, {ar(4*z,4)}, {vr(D1,16) if z else 0}")
    hl = []
    for u in range(HD, 28):
        for k, grp in enumerate(hload(u)): hl.append((4 * (u - HD) + 1 + 2 * k, 4 * (u - HD) + 3 + 2 * k, grp))
    TG = 40
    td = []
    for u in range(14):
        td.append((TG + 2 * u, TG + 2 * u + 6, [I(f"s_add_u32 {sC}, {sW2A}, {u*1024}")] + dma(WS_, L16, sC, (sW2B, u * 1024), 0, 'Tl', 'sc1')))
    rd = [(3, 3, [WaitVM('iF'), I('s_barrier')])]
    for z in range(28): rd.append((4 * (z >> 1) + 3, 4 * (z >> 1) + 12, f"ds_read_b128 {ar(4*z,4)}, v3 offset:{1024*z}"))
    rd.append((96, 100, [WaitVM('Tl'), I('s_barrier')]))
    for z in range(28): rd.append((max(96, 4 * (14 + (z >> 1)) + 3), max(n0 + z - 4, 4 * (14 + (z >> 1)) + 3), f"ds_read_b128 {ar(112+4*z,4)}, v4 offset:{1024*z}"))
    xs = []
    for qq in range(2):
        for z in range(2): xs.append((60, 90, f"v_permlane32_swap_b32 v{XR+4*qq+z}, v{XR+4*qq+2+z}"))
    for z in range(8):
        xs.append((60, 90, f"v_lshlrev_b32 v{XU+2*z}, 16, v{XR+z}"))
        xs.append((60, 90, f"v_and_b32 v{XU+2*z+1}, {sMASK}, v{XR+z}"))
    red = []
    for lam in range(1, 4):
        for q in range(4): red.append((n0 + 1, n0 + 6, I(f"ds_write_b128 v{4+lam}, {vr(GA[lam]+4*q,4)} offset:{1024*q}", 'pw')))
    red.append((n0 + 1, n0 + 8, [WaitLG('pw'), I('s_barrier')]))
    for lam in range(1, 4):
        for q in range(4): red.append((n0 + 1, n0 + 12, f"ds_read_b128 {vr(GA[lam]+4*q,4)}, v8 offset:{(lam-1)*4096+1024*q}"))
    G = GA[0]; last = len(spine) - 1
    P.e(f"s_mov_b32 {sDB1}, {f32bits(-math.log2(math.e)):#x}")
    for quad in range(4):
        r = [4 * quad + k for k in range(4)]
        for lam in range(1, 4):
            for k in r: red.append((n0 + 1, last, f"v_add_f32 v{G+k}, v{G+k}, v{GA[lam]+k}"))
        T = GA[1]
        for k in r: red.append((n0 + 1, last, f"v_mul_f32 v{T+k}, {sDB1}, v{G+k}"))
        for k in r: red.append((n0 + 1, last, f"v_exp_f32 v{T+k}, v{T+k}"))
        for k in r: red.append((n0 + 1, last, f"v_add_f32 v{T+k}, 1.0, v{T+k}"))
        for k in r: red.append((n0 + 1, last, f"v_rcp_f32 v{T+k}, v{T+k}"))
        for k in r: red.append((n0 + 1, last, f"v_mul_f32 v{G+k}, v{G+k}, v{T+k}"))
    stm = [(4, 4, stamp_i(3)), (56, 56, stamp_i(4)), (n0 - 1, n0 - 1, stamp_i(5))] if STAMPS else []
    P.add(weave(spine, [hl, td, rd, xs, red, stm], cap=6, report=rep))
    stamp(P, 6)
    for z in range(8): P.e(f"v_cvt_pk_bf16_f32 v{24+z}, v{D1+2*z}, v{D1+2*z+1}")
    for ss in range(2): P.e(f"{M} {vr(SA,16)}, {vr(24+4*ss,4)}, {vr(DPF+4*ss,4)}, {vr(SA,16) if ss else 0}")
    for r in range(16): P.e(f"v_fma_f32 v{G+r}, v{SA+r}, v{G+r}, v{XU+r}")
    for z in range(8): P.e(f"v_cvt_pk_bf16_f32 v{24+z}, v{G+2*z}, v{G+2*z+1}")
    for qq in range(2):
        for z in range(2): P.e(f"v_permlane32_swap_b32 v{24+4*qq+z}, v{24+4*qq+2+z}")
    P.e(f"buffer_store_dwordx4 v[24:27], v2, {OUT_}, {sDB0} offen")
    P.e(f"buffer_store_dwordx4 v[28:31], v2, {OUT_}, {sDB0} offen offset:32")

def kernel_text(label, body):
    return f".globl {label}\n.p2align 8\n.type {label},@function\n{label}:\n{body}"
def descriptor(label):
    return f""".p2align 6
.amdhsa_kernel {label}
  .amdhsa_next_free_vgpr 512
  .amdhsa_next_free_sgpr 102
  .amdhsa_accum_offset 256
  .amdhsa_group_segment_fixed_size 0
  .amdhsa_kernarg_size 80
  .amdhsa_user_sgpr_count 2
  .amdhsa_user_sgpr_kernarg_segment_ptr 1
  .amdhsa_system_sgpr_workgroup_id_x 1
.end_amdhsa_kernel
"""
def build_split():
    rep = []
    ks = []
    for lbl, fn in (("g1_kernel", lambda P: phase_g1(P, False, rep)), ("c_kernel", lambda P: phase_c(P, False)), ("g2_kernel", lambda P: phase_g2(P, False, rep))):
        P = Prog(); prologue(P, f"L_end_{lbl}"); fn(P)
        stamp_out(P, len(ks), (10, 5, 7)[len(ks)])
        P.raw(f"L_end_{lbl}:"); P.e("s_endpgm")
        ks.append((lbl, P.finalize())); print(lbl, P.stats, file=sys.stderr)
    for r in rep: print(r, sum(max(32, 8 + 4 * x) for x in r[1:]), file=sys.stderr)
    s = "".join(f"; @launch kernel={l} grid=({NWG},1,1) block=(256,1,1) lds=163840\n" for l, _ in ks)
    s += '.amdgcn_target "amdgcn-amd-amdhsa--gfx950"\n.text\n'
    s += "".join(kernel_text(l, b) for l, b in ks)
    s += '.section .rodata,"a"\n' + "".join(descriptor(l) for l, _ in ks) + tables()
    return s
if __name__ == "__main__":
    mode = sys.argv[1]; out = sys.argv[2]
    STAMPS = 'stamps' in sys.argv
    open(out, "w").write(build_split())
```

```python
import sys, math
import numpy as np
from asmlib import *
import gen as G
from gen import (NAME, HBUF, YBUF, TBUF, FT, IFT, CT, DP, TAB_SIZE, SLOT, X_, W1_, W3_, W2_, WR_, WI_, OUT_, WS_, TAB_, DBG_,
                 sW, sI, sJ, sP, sK, sT, sE, sN2, sMASK, sONES, sW4K, sA, sB, sC, sD, sDB0, sDB1, sH0, sH1, sW2A, sW2B,
                 vr, ar, XF, ACC, ABUF, L16, f32bits, bfbits, dma, tables)
NAUX = 32; NMAIN = 224
FLG = 0xA80000
YF, HF0, HF1, TF = FLG, FLG + 0x4000, FLG + 0x8000, FLG + 0xC000
STAMP = 0xA90000; WS_SIZE = 0xB00000
sBID = 's59'
sE1, sE2, sE3, sE4 = 's70', 's71', 's4', 's5'
M32 = "v_mfma_f32_32x32x16_bf16"; M16 = "v_mfma_f32_16x16x32_bf16"
STAMPS = False
SPIN = 100000
def stamp_i(n): return [I(f"s_memtime s[{72+2*n}:{73+2*n}]")] if STAMPS else []
def stamp(P, n): P.add(stamp_i(n))
def stamp_out(P, n):
    if not STAMPS: return
    P.e("s_waitcnt vmcnt(0)")
    P.e(f"s_memtime s[{72+2*n}:{73+2*n}]\ns_memrealtime s[4:5]\ns_waitcnt lgkmcnt(0)")
    P.e(f"s_lshl_b32 {sA}, {sBID}, 2\ns_add_u32 {sA}, {sA}, {sW}\ns_lshl_b32 {sA}, {sA}, 6\ns_add_u32 {sA}, {sA}, {STAMP}")
    P.e("v_mov_b32 v2, 0")
    for k in range(n + 1):
        P.e(f"v_mov_b32 v3, s{72+2*k}\nbuffer_store_dword v3, v2, {WS_}, {sA} offen offset:{4*k}")
    P.e(f"v_mov_b32 v3, s6\nbuffer_store_dword v3, v2, {WS_}, {sA} offen offset:56")
    P.e(f"v_mov_b32 v3, s4\nbuffer_store_dword v3, v2, {WS_}, {sA} offen offset:60")

slow_paths = []
def poll_check(name, loads, regs):
    t = regs[0]
    red = [f"v_min_u32 v{t}, v{t}, v{r}" for r in regs[1:]]
    slow_paths.append(f"L_slow_{name}:\n    s_mov_b32 s3, 0\nL_retry_{name}:\n" + "".join(f"    {x}\n" for x in loads) + "    s_waitcnt vmcnt(0)\n" +
                      "".join(f"    {x}\n" for x in red) +
                      f"    v_cmp_eq_u32 vcc, 0, v{t}\n    s_add_u32 s3, s3, 1\n    s_cbranch_vccz L_ok_{name}\n    s_cmp_lt_u32 s3, {SPIN}\n"
                      f"    s_cbranch_scc1 L_retry_{name}\n    s_branch L_ok_{name}\n")
    return [I(x) for x in red] + [I(f"v_cmp_eq_u32 vcc, 0, v{t}"), I(f"s_cbranch_vccnz L_slow_{name}"), Raw(f"L_ok_{name}:")]
def flag_set(soff, tags, tmp=31):
    return [WaitVM(tags), I(f"v_mov_b32 v{tmp}, 1"), I(f"v_mov_b32 v{tmp-1}, 0"), I("s_mov_b64 exec, 1"),
            I(f"buffer_store_dword v{tmp}, v{tmp-1}, {WS_}, {soff} offen sc1"), I("s_mov_b64 exec, -1")]

def dbslot(d, c): return ([9, 0, 1, 2, 3, 4, 5] if d == 0 else [6, 9, 0, 1, 2, 3, 4])[c]
SCR = 143360
def db_dma(d, c):
    base = dbslot(d, c) * SLOT; koff = 64 * c * 3584 + 128 * d; tag = f"db{d}_{c}"
    return [[I(f"s_add_u32 {sA}, {sDB0}, {koff}")] + dma(W1_, 'v4', sA, (sW4K, base), 0, tag),
            [I(f"s_add_u32 {sB}, {sDB1}, {koff}")] + dma(W1_, 'v4', sB, None, 1024, tag),
            dma(W3_, 'v4', sA, (sW4K, base + 2048), 0, tag), dma(W3_, 'v4', sB, None, 1024, tag)]
def db_tr(d, s, m, fb, dst, tag=None):
    c, q = s >> 2, s & 3
    off = dbslot(d, c) * SLOT + q * 4096 + m * 2048
    win, off = off >> 16, off & 0xffff
    base = f"v{11 + 2 * win + fb}"
    return [I(f"ds_read_b64_tr_b16 {ar(dst, 2)}, {base} offset:{off}", tag), I(f"ds_read_b64_tr_b16 {ar(dst + 2, 2)}, {base} offset:{off + 512}", tag)]
NW2R = 20
STG = (5, 7, 8)
def w2_lds(u):
    if u < NW2R: return STG[(u >> 1) % 3] * SLOT + (u & 1) * 2048
    v = u - NW2R
    return (1 + (v >> 1)) * SLOT + (v & 1) * 2048
def w2_dma(u):
    s = 8 * (u % 14) + 4 * (u // 14); tag = f"w2_{u}"
    return [[I(f"s_add_u32 {sC}, {sW2A}, {s * 16 * 896}")] + dma(W2_, 'v5', sC, (sW4K, w2_lds(u)), 0, tag),
            [I(f"s_add_u32 {sD}, {sW2B}, {s * 16 * 896}")] + dma(W2_, 'v5', sD, None, 1024, tag)]
def w2_tr(u):
    off = w2_lds(u) - (5 * SLOT if u < NW2R else SLOT)
    o = []
    for dt in range(2):
        o += [I(f"ds_read_b64_tr_b16 {ar(8*u+4*dt, 2)}, v{17+dt} offset:{off}", f"w2r_{u}"),
              I(f"ds_read_b64_tr_b16 {ar(8*u+4*dt+2, 2)}, v{17+dt} offset:{off+1024}", f"w2r_{u}")]
    return o
def lines(t): return [x.strip() for x in t.strip().split('\n') if x.strip()]

def aux(P):
    P.raw("L_aux:", sync=True)
    P.e(f"""
    s_cmp_lg_u32 s2, 0
    s_cbranch_scc1 L_end
    v_mov_b32 v4, 0
    v_mov_b32 v5, 0
    v_mov_b32 v6, 0
    v_mov_b32 v7, 0
    s_lshl_b32 {sA}, {sW}, 14
    s_add_u32 {sA}, {sA}, {FLG}
    s_waitcnt lgkmcnt(0)
    """)
    for k in range(16):
        P.e(f"buffer_store_dwordx4 v[4:7], {L16}, {WS_}, {sA} offen offset:{(k & 3) * 1024} sc1")
        if k & 3 == 3: P.e(f"s_add_u32 {sA}, {sA}, 4096")
    P.e(f"""
    v_mov_b32 v8, 1
    s_lshl_b32 {sA}, {sW}, 2
    s_waitcnt vmcnt(0)
    s_mov_b64 exec, 1
    buffer_store_dword v8, v4, {DBG_}, {sA} offen sc1
    s_endpgm
    """)

def main(P, rep):
    if STAMPS: P.e("s_memrealtime s[6:7]")
    stamp(P, 0)
    P.e(f"s_cmp_ge_u32 s2, {NAUX+NMAIN}\ns_cbranch_scc1 L_end")
    for srd, off in ((8, 0), (12, 32), (16, 40), (36, 72), (44, 64), (20, 48), (24, 8), (28, 16), (32, 56)):
        P.e(f"s_load_dwordx2 s[{srd}:{srd+1}], s[0:1], {off}")
    P.e("s_getpc_b64 s[40:41]\ns_add_u32 s40, s40, TABS@rel32@lo+4\ns_addc_u32 s41, s41, TABS@rel32@hi+12")
    for srd, size in ((8, 1835008), (12, 1605632), (16, 1605632), (20, 1605632), (24, 921600), (28, 921600), (32, 1835008), (36, WS_SIZE), (40, TAB_SIZE), (44, 256)):
        P.e(f"s_mov_b32 s{srd+2}, {size}\ns_mov_b32 s{srd+3}, 0x20000")
    P.e(f"""
    v_lshrrev_b32 v2, 6, v0
    v_and_b32 v0, 63, v0
    v_readfirstlane_b32 {sW}, v2
    v_lshlrev_b32 {L16}, 4, v0
    s_cmp_lt_u32 s2, {NAUX}
    s_cbranch_scc1 L_aux
    s_sub_u32 {sBID}, s2, {NAUX}
    s_and_b32 {sP}, {sBID}, 7
    s_lshr_b32 {sK}, {sBID}, 3
    s_and_b32 {sA}, {sK}, 3
    s_lshr_b32 {sE}, {sK}, 2
    s_lshr_b32 {sI}, {sP}, 1
    s_lshl_b32 {sI}, {sI}, 2
    s_add_u32 {sI}, {sI}, {sA}
    s_and_b32 {sJ}, {sP}, 1
    s_mul_i32 {sJ}, {sJ}, 7
    s_add_u32 {sJ}, {sJ}, {sE}
    s_lshl_b32 {sT}, {sP}, 2
    s_add_u32 {sT}, {sT}, {sA}
    s_lshl_b32 {sN2}, {sI}, 2
    s_add_u32 {sN2}, {sN2}, {sW}
    s_lshl_b32 {sW4K}, {sW}, 12
    s_mov_b32 {sMASK}, 0xffff0000
    s_mov_b32 {sONES}, 0x3f803f80
    v_lshrrev_b32 v23, 3, v0
    v_and_b32 v24, 7, v0
    v_lshrrev_b32 v25, 1, v23
    v_xor_b32 v26, v24, v25
    v_mul_u32_u24 v2, 57344, v23
    v_lshl_add_u32 v2, v26, 4, v2
    v_xor_b32 v3, 64, v2
    s_mul_i32 {sE1}, {sN2}, 896
    """)
    def xdma(c):
        return [[I(f"s_add_u32 {sC}, {sE1}, {rb*(8*57344-1024) + c*128}")] + dma(X_, 'v3' if rb & 1 else 'v2', sC, (sW4K, c * SLOT) if rb == 0 else None, rb * 1024, f'x{c}') for rb in range(4)]
    setup = lines(f"""
    v_mul_u32_u24 v4, 3584, v23
    v_mul_u32_u24 v5, 896, v23
    v_and_b32 v25, 1, v25
    v_lshlrev_b32 v25, 2, v25
    v_xor_b32 v26, v24, v25
    v_lshl_add_u32 v4, v26, 4, v4
    v_lshl_add_u32 v5, v26, 4, v5
    s_mul_i32 {sDB0}, {sW}, {16*3584}
    s_lshl_b32 {sA}, {sJ}, 8
    s_add_u32 {sDB0}, {sDB0}, {sA}
    s_add_u32 {sDB1}, {sDB0}, {8*3584-1024}
    v_and_b32 v23, 31, v0
    v_lshlrev_b32 v24, 7, v23
    v_add_u32 v24, {sW4K}, v24
    v_bfe_u32 v25, v0, 1, 3
    v_lshrrev_b32 v26, 5, v0
    v_xor_b32 v25, v25, v26
    v_lshl_add_u32 v6, v25, 4, v24
    v_xor_b32 v7, 32, v6
    v_xor_b32 v8, 64, v6
    v_xor_b32 v9, 0x60, v6
    v_add_u32 v10, {7*SLOT}, {L16}
    v_bfe_u32 v24, v0, 2, 2
    v_lshlrev_b32 v23, 7, v24
    v_bfe_u32 v25, v0, 4, 1
    v_lshl_add_u32 v23, v25, 5, v23
    v_and_b32 v25, 3, v0
    v_lshl_add_u32 v23, v25, 3, v23
    v_bfe_u32 v24, v0, 3, 1
    v_lshl_add_u32 v11, v24, 6, v23
    v_lshl_add_u32 v11, v26, 10, v11
    v_xor_b32 v12, 64, v11
    v_add_u32 v13, 0x10000, v11
    v_add_u32 v14, 0x10000, v12
    v_add_u32 v15, 0x20000, v11
    v_add_u32 v16, 0x20000, v12
    s_and_b32 {sA}, {sW}, 1
    v_xor_b32 v24, {sA}, v24
    v_lshl_add_u32 v17, v24, 6, v23
    v_lshl_add_u32 v17, v26, 9, v17
    s_add_u32 {sA}, {sW4K}, {5*SLOT}
    v_add_u32 v17, {sA}, v17
    v_xor_b32 v18, 64, v17
    s_mul_i32 {sW2A}, {sW}, {16*896}
    s_lshl_b32 {sA}, {sE}, 7
    s_add_u32 {sW2A}, {sW2A}, {sA}
    s_add_u32 {sW2B}, {sW2A}, {8*896-1024}
    s_mul_i32 {sH0}, {sN2}, {112*1024}
    s_lshl_b32 {sA}, {sJ}, 13
    s_add_u32 {sH0}, {sH0}, {sA}
    s_add_u32 {sH0}, {sH0}, {HBUF}
    s_add_u32 {sH1}, {sH0}, 4096
    v_mov_b32 v28, 0
    v_mov_b32 v29, 0
    v_mov_b32 v30, 0
    v_mov_b32 v31, 0
    """)
    setup += lines(f"""
    v_bfe_u32 v23, v0, 2, 1
    v_cmp_eq_u32 vcc, v23, v26
    v_bfe_u32 v23, v0, 3, 1
    v_and_b32 v24, 3, v0
    v_lshl_add_u32 v23, v23, 2, v24
    v_cndmask_b32 v23, 8, v23, vcc
    v_and_b32 v24, 1, v0
    v_lshlrev_b32 v24, 4, v24
    v_lshlrev_b32 v24, v24, 0x3f80
    v_lshrrev_b32 v23, 1, v23
    v_bfe_u32 v25, v0, 4, 1
    v_lshl_add_u32 v23, v25, 3, v23
    """)
    for z in range(8):
        setup += [f"v_cmp_eq_u32 vcc, {z if z < 4 else z + 4}, v23", f"v_cndmask_b32 v25, 0, v24, vcc", f"v_accvgpr_write_b32 a{16+z}, v25"]
    setup = [x.replace("v_lshlrev_b32 v24, v24, 0x3f80", "v_mov_b32 v25, 0x3f80\nv_lshlrev_b32 v24, v24, v25") for x in setup]
    setup = sum([x.split('\n') for x in setup], [])
    P.e("s_waitcnt lgkmcnt(0)")
    first = xdma(0) + xdma(1) + xdma(2) + xdma(3)
    k = 0
    for gi, grp in enumerate(first):
        P.add(grp)
        n = (len(setup) * (gi + 1)) // len(first)
        P.add(setup[k:n]); k = n
    stamp(P, 1)
    later = xdma(4) + xdma(5) + xdma(6) + db_dma(0, 0) + db_dma(0, 1) + db_dma(0, 2) + db_dma(0, 3)
    def rd(c): return [I(f"ds_read_b128 {vr(XF+16*c+4*q, 4)}, v{6+q} offset:{(c & 3) * SLOT}", f"xr{c}") for q in range(4)]
    P.waitvm('x0'); P.add(rd(0))
    for c in range(7):
        dots = []
        for r in range(16):
            x = XF + 16 * c + r
            dots += [f"v_dot2c_f32_bf16 v{28+(r&1)}, {sONES}, v{x}", f"v_dot2c_f32_bf16 v{30+(r&1)}, v{x}, v{x}"]
        for g in range(4):
            P.add(later[4 * c + g])
            if g == 2 and c < 6:
                if c == 3: P.add([f"v_add_u32 v{6+q}, 0x10000, v{6+q}" for q in range(4)])
                P.waitvm(f'x{c+1}'); P.add(rd(c + 1))
            P.add(dots[8 * g:8 * g + 8])
    stamp(P, 2)
    CM = 240; IDT = ACC[4]
    P.e(f"""
    s_nop 2
    v_add_f32 v28, v28, v29
    v_add_f32 v30, v30, v31
    v_mov_b32 v29, v28
    v_mov_b32 v31, v30
    v_permlane32_swap_b32 v28, v29
    v_permlane32_swap_b32 v30, v31
    v_add_f32 v28, v28, v29
    v_add_f32 v30, v30, v31
    v_mul_f32 v19, {f32bits(-1/448):#x}, v28
    v_mul_f32 v30, {f32bits(1/448):#x}, v30
    """)
    for r in range(16): P.e(f"v_mov_b32 v{CM+r}, v19")
    def ident(pp):
        return [f"{M32} {vr(IDT,16)}, {ar(16,4)}, {vr(XF+8*pp,4)}, {vr(CM,16)}", f"{M32} {vr(IDT,16)}, {ar(20,4)}, {vr(XF+8*pp+4,4)}, {vr(IDT,16)}"]
    def identcvt(pp): return [f"v_cvt_pk_bf16_f32 v{XF+8*pp+z}, v{IDT+2*z}, v{IDT+2*z+1}" for z in range(8)]
    P.add(ident(0))
    P.waitvm(['db0_0', 'db0_1']); P.e("s_barrier")
    tiles = ((0, 0, ACC[0]), (1, 0, ACC[2]), (0, 1, ACC[1]), (1, 1, ACC[3]))
    for t, (m, fb, acc) in enumerate(tiles): P.add(db_tr(0, 0, m, fb, ABUF + 4 * t))
    P.e(f"""
    v_fma_f32 v30, -v19, v19, v30
    v_max_f32 v30, 0, v30
    v_add_f32 v21, {f32bits(1e-5):#x}, v30
    v_rsq_f32 v29, v21
    v_and_b32 v23, 31, v0
    s_lshl_b32 {sA}, {sW}, 7
    s_add_u32 {sA}, {sA}, {SCR}
    v_lshl_add_u32 v23, v23, 2, {sA}
    ds_write_b32 v23, v29
    v_mul_f32 v20, {f32bits(-math.log2(math.e)):#x}, v29
    v_lshrrev_b32 v23, 5, v0
    v_lshl_add_u32 v19, v23, 4, {sA}
    """)
    P.add(identcvt(0))
    stamp(P, 3)
    spine = []; ix = {}
    for s in range(28):
        for t, (m, fb, acc) in enumerate(tiles):
            ix[s, t] = len(spine)
            spine.append(f"{M32} {vr(acc,16)}, {ar(ABUF+16*(s&1)+4*t,4)}, {vr(XF+4*s,4)}, {vr(acc,16) if s else 0}")
            if s % 2 == 0 and t == 1 and s < 26:
                ix['id', s // 2 + 1] = len(spine); spine += ident(s // 2 + 1)
    n0 = len(spine)
    DA = ACC[5]
    for s in range(28):
        ix['d', s] = len(spine)
        spine.append(f"{M32} {vr(DA,16)}, {vr(XF+4*s,4)}, {ar(ABUF+16*((s>>2)&1)+4*(s&3),4)}, {vr(DA,16) if s else 0}")
    n1 = len(spine)
    Pp, Q = ACC[4], ACC[5]
    def setof(k): return ABUF + 16 * (((k >> 1) + 1) & 1) + 8 * (k & 1)
    for k in range(56):
        half, s = divmod(k, 28)
        accs = (ACC[0], ACC[2]) if half == 0 else (ACC[4], ACC[5])
        for m in range(2):
            ix['p', k, m] = len(spine)
            spine.append(f"{M32} {vr(accs[m],16)}, {ar(setof(k)+4*m,4)}, {vr(XF+4*s,4)}, {vr(accs[m],16) if s else 0}")
        if k == 3:
            ix['B'] = len(spine)
            for ss in range(2):
                spine.append(f"{M32} {vr(Pp,16)}, {vr(240+4*ss,4)}, {ar(4*ss,4)}, {vr(Pp,16) if ss else 0}")
                spine.append(f"{M32} {vr(Q,16)}, {vr(240+4*ss,4)}, {ar(8+4*ss,4)}, {vr(Q,16) if ss else 0}")
    n2 = len(spine); last = n2 - 1
    trs = []; bar = {}
    def macro(start, nxt, reads, tag, pre=None):
        if pre: trs.append((start, start, pre))
        for x in reads: trs.append((start, max(start, nxt - 3), x))
        trs.append((nxt - 1, nxt - 1, WaitLG(tag)))
    for s in range(1, 28):
        reads = sum([db_tr(0, s, m, fb, ABUF + 16 * (s & 1) + 4 * t, f"r{s}") for t, (m, fb, acc) in enumerate(tiles)], [])
        pre = None; st = ix[s - 1, 0] - 1
        if s in (8, 16, 24):
            c = s // 4
            pre = [WaitVM([f'db0_{c}', f'db0_{min(c+1,6)}'] + (['F'] if s == 24 else [])), I('s_barrier')]; bar[s] = st
        macro(st, ix[s, 0], reads, f"r{s}", pre)
    for mc in range(7):
        reads = [I(f"ds_read_b128 {ar(ABUF+16*(mc&1)+4*q,4)}, v10 offset:{(4*mc+q)*1024}", f"f{mc}") for q in range(4)]
        st = (ix[27, 0] if mc == 0 else ix['d', 4 * mc - 4]) - 1
        pre = None
        if mc == 1: pre = [I('s_barrier')]; bar['D'] = st
        macro(st, ix['d', 4 * mc], reads, f"f{mc}", pre)
    for mc in range(28):
        reads = []
        for k in (2 * mc, 2 * mc + 1):
            half, s = divmod(k, 28)
            for m in range(2): reads += db_tr(1, s, m, half, setof(k) + 4 * m, f"p{mc}")
        st = (ix['d', 24] if mc == 0 else ix['p', 2 * mc - 2, 0]) - 1
        pre = None
        if mc == 0: pre = [WaitVM([f'db1_{c}' for c in range(5)]), I('s_barrier')]; bar['D2'] = st
        if mc == 6: pre = [WaitVM(['db1_5', 'db1_6']), I('s_barrier')]; bar['E'] = st
        if mc == 21: pre = [I('s_barrier')]; bar['F'] = st
        macro(st, ix['p', 2 * mc, 0], reads, f"p{mc}", pre)
    idc = []
    for pp in range(1, 14):
        for x in identcvt(pp): idc.append((ix['id', pp] + 3, ix[2 * pp, 0] - 2, x))
    dm = []
    def put(groups, lo, step=2, slack=3):
        for k, grp in enumerate(groups): dm.append((lo + step * k, lo + step * k + slack, grp))
        return lo + step * len(groups)
    fset = [I(f"s_mul_i32 {sE1}, {sJ}, 28672"), I(f"s_add_u32 {sE1}, {sE1}, {FT}"), I(f"s_lshl_b32 {sE2}, {sW}, 10"), I(f"s_add_u32 {sE1}, {sE1}, {sE2}")]
    fd = [[I(f"s_add_u32 {sC}, {sE1}, {u*4096}")] + dma(TAB_, L16, sC, (sE2, 7 * SLOT + u * 4096), 0, 'F') for u in range(7)]
    g = put(db_dma(0, 4) + db_dma(0, 5) + db_dma(0, 6) + db_dma(1, 0), 0)
    g = put([fset + fd[0]] + fd[1:3], g)
    g = put(db_dma(1, 1) + db_dma(1, 2) + fd[3:], max(g, bar[8] + 1))
    g = put(db_dma(1, 3) + db_dma(1, 4), max(g, bar[16] + 1))
    dbgld = f"buffer_load_dword v27, v26, {DBG_}, 0 offen sc1"
    dm.append((g, g + 3, ["v_and_b32 v26, 3, v0", "v_lshlrev_b32 v26, 2, v26", I(dbgld)]))
    g = put(db_dma(1, 5) + db_dma(1, 6), max(g, bar[24] + 1))
    w2s = []
    g = max(g, bar['D'] + 1)
    when = {}
    for u in range(NW2R):
        if u == 2: g = max(g, bar['E'] + 1)
        if u >= 6: w2s.append((g, g + 2, [WaitLG(f'w2r_{u-6}')]))
        for grp in w2_dma(u):
            w2s.append((g, g + 2, grp)); g += 2
        when[u] = g
        if u >= 4:
            for x in [WaitVM(f'w2_{u-4}')] + w2_tr(u - 4): w2s.append((g, g + 2, x))
    for u in range(NW2R - 4, NW2R):
        g += 3
        for x in [WaitVM(f'w2_{u}')] + w2_tr(u): w2s.append((min(g, last), min(g + 2, last), x))
    print("w2 stream ends at gap", g, "of", last, file=sys.stderr)
    dm += w2s
    tb = lines(f"""
    v_bfe_u32 v23, v0, 2, 3
    v_lshlrev_b32 v22, 13, v23
    v_lshrrev_b32 v24, 5, v0
    v_lshl_add_u32 v22, v24, 6, v22
    v_and_b32 v25, 3, v0
    v_lshl_add_u32 v22, v25, 4, v22
    v_and_b32 v25, 1, v0
    v_lshl_add_u32 v23, v23, 1, v25
    v_sub_u32 v25, 32, v23
    v_cmp_eq_u32 vcc, 0, v23
    v_and_b32 v2, 2, v0
    v_lshlrev_b32 v24, 8, v24
    v_cndmask_b32 v25, v25, 16, vcc
    v_cmp_eq_u32 vcc, 0, v2
    v_add_u32 v24, {sN2}, v24
    v_cvt_f32_u32 v24, v24
    v_cndmask_b32 v23, v25, v23, vcc
    v_cvt_f32_u32 v23, v23
    v_mul_f32 v24, v23, v24
    v_mul_f32 v24, {f32bits(1/2048):#x}, v24
    v_mul_f32 v23, {f32bits(1/32):#x}, v23
    """)
    for ss in range(2):
        for z in range(4):
            for y in range(2):
                e = 2 * z + y; n1off = 16 * ss + 8 * (e >> 2) + (e & 3)
                tb += [f"v_mov_b32 v{2+y}, {f32bits(float(n1off)):#x}"]
            tb += ["v_fma_f32 v2, v23, v2, v24", "v_fma_f32 v3, v23, v3, v24", "v_fract_f32 v2, v2", "v_fract_f32 v3, v3",
                   "v_cos_f32 v6, v2", "v_cos_f32 v7, v3", "v_sin_f32 v8, v2", "v_sin_f32 v9, v3",
                   "v_cvt_pk_bf16_f32 v6, v6, v7", "v_cvt_pk_bf16_f32 v8, v8, v9",
                   f"v_accvgpr_write_b32 a{4*ss+z}, v6", f"v_accvgpr_write_b32 a{8+4*ss+z}, v8"]
    stb = [(0, n0 - 10, x) for x in tb]
    b0 = ix['B']
    for q in range(4): stb.append((n0 + 4, n1 - 4, f"ds_read_b128 {vr(ACC[4]+4*q,4)}, v19 offset:{32*q}"))
    for r in range(16): stb.append((n1 + 1, b0 - 2, f"v_mul_f32 v{DA+r}, v{ACC[4]+r}, v{DA+r}"))
    for z in range(8): stb.append((n1 + 1, b0 - 1, f"v_cvt_pk_bf16_f32 v{240+z}, v{DA+2*z}, v{DA+2*z+1}"))
    lo, hi = b0 + 6, b0 + 22
    for r in range(8):
        stb.append((lo, hi, f"v_add_f32 v{Pp+r}, v{Pp+r}, v{Q+8+r}"))
        stb.append((lo, hi, f"v_sub_f32 v{Pp+8+r}, v{Pp+8+r}, v{Q+r}"))
    for sub in range(2):
        o = 240 + 4 * sub
        for z in range(2):
            stb.append((lo, hi, f"v_cvt_pk_bf16_f32 v{o+z}, v{Pp+4*sub+2*z}, v{Pp+4*sub+2*z+1}"))
            stb.append((lo, hi, f"v_cvt_pk_bf16_f32 v{o+2+z}, v{Pp+8+4*sub+2*z}, v{Pp+8+4*sub+2*z+1}"))
    stb.append((lo, hi, [f"s_lshl_b32 {sE1}, {sJ}, 17", f"s_lshl_b32 {sE2}, {sN2}, 7"]))
    stb.append((lo, hi, [f"s_add_u32 {sE1}, {sE1}, {sE2}", f"s_add_u32 {sE1}, {sE1}, {YBUF}", f"s_add_u32 {sE2}, {sE1}, 65536"]))
    for sub in range(2):
        o = 240 + 4 * sub
        stb.append((lo, hi, f"v_permlane32_swap_b32 v{o}, v{o+2}"))
        stb.append((lo, hi, f"v_permlane32_swap_b32 v{o+1}, v{o+3}"))
    for sub in range(2):
        stb.append((lo, hi, I(f"buffer_store_dwordx4 {vr(240+4*sub,4)}, v22, {WS_}, {sE2 if sub else sE1} offen sc1", 'Y')))
    stb.append((hi, hi + 4, poll_check('dbg', [dbgld], [27])))
    stb.append((hi + 18, hi + 20, [f"s_lshl_b32 {sE1}, {sJ}, 10", f"s_lshl_b32 {sE2}, {sN2}, 4", f"s_add_u32 {sE1}, {sE1}, {sE2}", f"s_add_u32 {sE1}, {sE1}, {YF}"]))
    stb.append((hi + 20, hi + 22, flag_set(sE1, 'Y')))
    epi = []
    for x in G.epilogue(ACC[0], ACC[2], 0): epi.append((n0 + 1, n1 - 2, x))
    for x in G.epilogue(ACC[1], ACC[3], 1): epi.append((n1, ix['p', 32, 0], x))
    for x in G.epilogue(ACC[0], ACC[2], 2): epi.append((ix['p', 28, 0] + 2, last, x))
    YL, ZL, TL = 0, 8192, 0
    CC, SS, NS = ACC[1], ACC[3], 64
    WRr, WIr = 32, 40
    cp = []
    g = ix['p', 36, 0]
    hf = [f"s_lshl_b32 {sE1}, {sN2}, 8", f"s_lshl_b32 {sE2}, {sJ}, 4", f"s_add_u32 {sE3}, {sE1}, {sE2}", f"s_add_u32 {sE1}, {sE3}, {HF0}", f"s_add_u32 {sE3}, {sE3}, {HF1}"]
    yfl = f"buffer_load_dword v27, {L16}, {WS_}, {sE4} offen sc1"
    wset = lines(f"""
    s_lshr_b32 {sE4}, {sK}, 1
    s_lshl_b32 {sE4}, {sE4}, 10
    s_add_u32 {sE4}, {sE4}, {YF}
    v_bfe_u32 v23, v0, 3, 1
    s_lshl_b32 {sE1}, {sP}, 1
    v_add_u32 v23, {sE1}, v23
    v_sub_u32 v24, 32, v23
    v_cmp_eq_u32 vcc, 0, v23
    s_and_b32 {sE1}, {sW}, 1
    s_cmp_eq_u32 {sE1}, 0
    v_cndmask_b32 v24, v24, 16, vcc
    s_cselect_b64 vcc, -1, 0
    v_cndmask_b32 v23, v24, v23, vcc
    v_lshrrev_b32 v24, 4, v0
    v_lshl_add_u32 v23, v24, 7, v23
    v_mul_u32_u24 v3, 450, v23
    v_and_b32 v24, 7, v0
    v_lshl_add_u32 v3, v24, 1, v3
    v_lshrrev_b32 v23, 3, v0
    v_bfe_u32 v25, v0, 4, 2
    v_lshlrev_b32 v25, 1, v25
    v_xor_b32 v24, v24, v25
    v_lshlrev_b32 v2, 7, v23
    v_lshl_add_u32 v2, v24, 4, v2
    """)
    cp.append((g - 8, g, wset[:13]))
    for x in wset[13:]: cp.append((g - 8, g, x))
    for r in range(16): cp.append((g - 2, g + 2, f"v_mov_b32 v{WRr+r}, 0"))
    for tt in range(2):
        cp.append((g, g + 2, [f"s_xor_b32 {sE2}, {sW}, {tt}", f"s_mul_i32 {sE2}, {sE2}, {16*32*450}", f"s_lshl_b32 {sE1}, {sK}, 4", f"s_add_u32 {sE2}, {sE2}, {sE1}"]))
        for r in range(4):
            cp.append((g, g + 2, [f"s_add_u32 {sE1}, {sE2}, {r*14400+2}", f"buffer_load_short_d16_hi v{WRr+4*tt+r}, v3, {WR_}, {sE1} offen"]))
            cp.append((g, g + 2, f"buffer_load_short_d16_hi v{WIr+4*tt+r}, v3, {WI_}, {sE1} offen")); g += 1
    for tt in range(2):
        cp.append((g, g + 2, [f"s_xor_b32 {sE1}, {sW}, {tt}", f"s_lshl_b32 {sE1}, {sE1}, 12", f"s_add_u32 {sE1}, {sE1}, {CT}"]))
        for s in range(2):
            cp.append((g, g + 2, f"buffer_load_dwordx4 {vr(CC+8*tt+4*s,4)}, {L16}, {TAB_}, {sE1} offen offset:{2048*s}")); g += 1
            cp.append((g, g + 2, f"buffer_load_dwordx4 {vr(SS+8*tt+4*s,4)}, {L16}, {TAB_}, {sE1} offen offset:{2048*s+1024}")); g += 1
    cp.append((g, g + 2, hf)); cp.append((g, g + 2, flag_set(sE1, ['h0', 'h1'])))
    cp.append((g, g + 2, yfl))
    print("C prefetch ends at gap", g, "of", last, file=sys.stderr)
    stm = [(n0 - 1, n0 - 1, stamp_i(4)), (n1 - 1, n1 - 1, stamp_i(5)), (ix['p', 28, 0], ix['p', 28, 0], stamp_i(6))] if STAMPS else []
    P.add(weave(spine, [trs, idc, dm, stb, epi, cp, stm], cap=5, report=rep))
    stamp(P, 7)
    P.add(poll_check('y', [yfl], [27]))
    P.e(f"""
    s_lshl_b32 {sA}, {sK}, 3
    s_add_u32 {sA}, {sA}, {sP}
    s_lshl_b32 {sA}, {sA}, 13
    s_lshl_b32 {sB}, {sW}, 11
    s_add_u32 {sA}, {sA}, {sB}
    s_add_u32 {sA}, {sA}, {YBUF}
    """)
    P.add(dma(WS_, 'v2', sA, (sB, YL), 0, 'Yl', 'sc1')); P.add(dma(WS_, 'v2', sA, None, 1024, 'Yl', 'sc1'))
    P.e("s_barrier")
    IMG, TLD, IFL = SLOT, 106496, 106496
    P.e(f"s_mul_i32 {sE1}, {sE}, 57344\ns_mul_i32 {sE2}, {sW}, 14336\ns_add_u32 {sE1}, {sE1}, {sE2}\ns_add_u32 {sE1}, {sE1}, {IFT}\ns_add_u32 {sE2}, {sE2}, {IFL}")
    bulk = sum([w2_dma(u) for u in range(NW2R, 28)], []) + [[I(f"s_add_u32 {sC}, {sE1}, {u*1024}")] + dma(TAB_, L16, sC, (sE2, u * 1024), 0, 'iF') for u in range(14)]
    YFr, XA, ZF, VA, CO = 96, 112, 64 + 16, 128, 48
    sc = 2.0 / (2048 * 448)
    work = [ins(x) for x in G.epilogue(ACC[4], ACC[5], 3)]
    work += [ins(x) for x in lines(f"""
    v_lshrrev_b32 v23, 5, v0
    s_lshl_b32 {sA}, {sP}, 1
    v_add_u32 v23, {sA}, v23
    v_sub_u32 v24, 32, v23
    v_cmp_eq_u32 vcc, 0, v23
    v_and_b32 v25, 15, v0
    s_lshl_b32 {sA}, {sW}, 4
    v_cndmask_b32 v24, v24, 16, vcc
    v_add_u32 v25, {sA}, v25
    v_mul_u32_u24 v23, v23, v25
    v_mul_u32_u24 v24, v24, v25
    v_cvt_f32_u32 v23, v23
    v_cvt_f32_u32 v24, v24
    v_mul_f32 v23, {f32bits(1/2048):#x}, v23
    v_mul_f32 v24, {f32bits(1/2048):#x}, v24
    v_cos_f32 v{CO}, v23
    v_sin_f32 v{CO+1}, v23
    v_cos_f32 v26, v24
    v_sin_f32 v27, v24
    v_mul_f32 v{CO}, {f32bits(sc):#x}, v{CO}
    v_mul_f32 v{CO+1}, {f32bits(sc):#x}, v{CO+1}
    v_mul_f32 v26, {f32bits(sc):#x}, v26
    v_mul_f32 v27, {f32bits(sc):#x}, v27
    v_sub_f32 v28, 0, v{CO}
    v_sub_f32 v29, 0, v27
    v_cndmask_b32 v{CO+2}, v26, 0, vcc
    v_cndmask_b32 v{CO+3}, v27, 0, vcc
    v_cndmask_b32 v{CO+4}, v{CO+1}, 0, vcc
    v_cndmask_b32 v{CO+5}, v28, 0, vcc
    v_cndmask_b32 v{CO+6}, v29, v26, vcc
    v_cndmask_b32 v{CO+7}, v26, v27, vcc
    v_lshrrev_b32 v23, 2, v0
    v_lshlrev_b32 v4, 7, v23
    v_bfe_u32 v24, v0, 3, 2
    s_and_b32 {sA}, {sW}, 1
    v_xor_b32 v24, {sA}, v24
    v_lshl_add_u32 v4, v24, 5, v4
    v_and_b32 v24, 3, v0
    v_lshl_add_u32 v4, v24, 3, v4
    v_xor_b32 v9, 64, v4
    s_lshl_b32 {sB}, {sA}, 12
    s_lshr_b32 {sE4}, {sW}, 1
    s_lshl_b32 {sE4}, {sE4}, 11
    s_add_u32 {sB}, {sB}, {sE4}
    s_lshl_b32 {sA}, {sA}, 3
    s_add_u32 {sB}, {sB}, {sA}
    s_add_u32 {sB}, {sB}, {ZL}
    v_add_u32 v12, {sB}, {L16}
    v_xor_b32 v10, 8, v12
    v_and_b32 v23, 15, v0
    v_bfe_u32 v24, v0, 4, 1
    s_lshr_b32 {sA}, {sP}, 2
    v_xor_b32 v24, {sA}, v24
    v_lshlrev_b32 v24, 2, v24
    v_lshrrev_b32 v25, 5, v0
    v_lshl_add_u32 v24, v25, 1, v24
    v_and_b32 v25, 7, v0
    v_xor_b32 v24, v24, v25
    v_lshlrev_b32 v6, 7, v23
    v_lshl_add_u32 v6, v24, 4, v6
    s_lshl_b32 {sA}, {sW}, 11
    s_add_u32 {sA}, {sA}, {TL}
    v_add_u32 v6, {sA}, v6
    v_xor_b32 v11, 16, v6
    v_lshrrev_b32 v23, 3, v0
    v_xor_b32 v24, v23, v25
    v_lshlrev_b32 v7, 7, v23
    v_lshl_add_u32 v7, v24, 4, v7
    v_add_u32 v7, {sA}, v7
    v_mul_u32_u24 v8, 28672, v23
    v_lshl_add_u32 v8, v25, 4, v8
    v_subrev_u32 v17, {4*SLOT}, v17
    v_subrev_u32 v18, {4*SLOT}, v18
    """)]
    work += [ins(f"v_xor_b32 v{NS+r}, 0x80008000, v{SS+r}") for r in range(16)]
    work += [ins(x) for x in lines(f"""
    v_and_b32 v13, 15, v0
    v_min_u32 v13, 13, v13
    v_bfe_u32 v14, v0, 4, 1
    v_lshlrev_b32 v14, 8, v14
    v_lshl_add_u32 v13, v13, 4, v14
    s_lshl_b32 {sE4}, {sT}, 9
    s_add_u32 {sE4}, {sE4}, {HF0}
    """)]
    h0l = f"buffer_load_dword v14, v13, {WS_}, {sE4} offen sc1"
    work.append(I(h0l))
    nb = 18; k = 0
    for gi in range(nb):
        P.add(bulk[gi]); n = (len(work) * (gi + 1)) // nb; P.add(work[k:n]); k = n
    stamp(P, 8)
    P.waitvm('Yl'); P.e("s_barrier")
    for part in range(2):
        for s in range(2):
            for t in range(2):
                P.e(f"ds_read_b64_tr_b16 {vr(YFr+8*part+4*s+2*t,2)}, {'v9' if part else 'v4'} offset:{YL+(32*s+16*t)*128}")
    P.add(bulk[nb]); P.add(bulk[nb + 1])
    for k4 in range(4):
        s, term = k4 >> 1, k4 & 1
        for part in range(2):
            for tt in range(2):
                acc = XA + 8 * part + 4 * tt
                if term == 0: A, B = CC + 8 * tt + 4 * s, YFr + 8 * part + 4 * s
                else: A, B = (NS if part else SS) + 8 * tt + 4 * s, YFr + 8 * (1 - part) + 4 * s
                P.e(f"{M16} {vr(acc,4)}, {vr(A,4)}, {vr(B,4)}, {vr(acc,4) if k4 else 0}")
        P.add(bulk[nb + 2 + k4])
    for r in range(8): P.e(f"v_mul_f32 v{ZF+r}, v{XA+r}, v{WRr+r}\nv_mul_f32 v{ZF+8+r}, v{XA+r}, v{WIr+r}")
    P.add(bulk[nb + 6])
    for r in range(8): P.e(f"v_fma_f32 v{ZF+r}, -v{XA+8+r}, v{WIr+r}, v{ZF+r}\nv_fma_f32 v{ZF+8+r}, v{XA+8+r}, v{WRr+r}, v{ZF+8+r}")
    P.add(bulk[nb + 7])
    for z in range(8): P.e(f"v_cvt_pk_bf16_f32 v{24+z}, v{ZF+2*z}, v{ZF+2*z+1}")
    for part in range(2):
        P.e(f"ds_write_b64 v12, {vr(24+4*part,2)} offset:{1024*part}\nds_write_b64 v10, {vr(26+4*part,2)} offset:{1024*part}")
    P.add(flag_set(sE3, ['h2', 'h3'], tmp=16))
    P.add(poll_check('h0', [h0l], [14]))
    HB, HD = 176, 8
    P.e(f"""
    s_lshr_b32 {sA}, {sW}, 1
    s_lshl_b32 {sB}, {sT}, 1
    s_add_u32 {sN2}, {sA}, {sB}
    s_mul_i32 {sH0}, {sN2}, {112*1024}
    s_xor_b32 {sA}, {sN2}, 1
    s_mul_i32 {sH1}, {sA}, {112*1024}
    s_lshl_b32 {sA}, {sW}, 10
    s_add_u32 {sA}, {sA}, {HBUF}
    s_add_u32 {sH0}, {sH0}, {sA}
    s_add_u32 {sH1}, {sH1}, {sA}
    """)
    def hload(u):
        s = 8 * (u % 14) + 4 * (u // 14); b = HB + 8 * ((u + 4) % HD)
        return [[I(f"s_add_u32 {sA}, {sH0}, {s*1024}"), I(f"buffer_load_dwordx4 {vr(b,4)}, {L16}, {WS_}, {sA} offen sc1")],
                [I(f"s_add_u32 {sB}, {sH1}, {s*1024}"), I(f"buffer_load_dwordx4 {vr(b+4,4)}, {L16}, {WS_}, {sB} offen sc1")]]
    hq = sum([hload(u) for u in range(4)], [])
    P.add(hq[0]); P.add(hq[1])
    P.e("s_waitcnt lgkmcnt(0)\ns_barrier")
    ZF2 = 96
    for f in range(8): P.e(f"ds_read_b128 {vr(ZF2+4*f,4)}, {L16} offset:{ZL+1024*f}")
    rest = hq[2:] + bulk[nb + 8:]
    for k4 in range(4):
        s, term = k4 >> 1, k4 & 1
        for c in range(2):
            for part in range(2):
                acc = VA + 8 * c + 4 * part
                A = ZF2 + 16 * c + 8 * s + 4 * term
                B = ((CC, NS), (SS, CC))[part][term] + 4 * s
                P.e(f"{M16} {vr(acc,4)}, {vr(A,4)}, {vr(B,4)}, {vr(acc,4) if k4 else 0}")
        P.add(rest.pop(0))
    O = 96
    for row in range(2):
        c1, c2 = CO + 4 * row, CO + 4 * row + 2
        for r in range(4): P.e(f"v_mul_f32 v{O+8*row+r}, v{c1}, v{VA+r}\nv_mul_f32 v{O+8*row+4+r}, v{c1}, v{VA+4+r}")
        for r in range(4): P.e(f"v_fma_f32 v{O+8*row+r}, -v{c1+1}, v{VA+4+r}, v{O+8*row+r}\nv_fma_f32 v{O+8*row+4+r}, v{c1+1}, v{VA+r}, v{O+8*row+4+r}")
        P.add(rest.pop(0))
        for r in range(4): P.e(f"v_fma_f32 v{O+8*row+r}, v{c2}, v{VA+8+r}, v{O+8*row+r}\nv_fma_f32 v{O+8*row+4+r}, v{c2}, v{VA+12+r}, v{O+8*row+4+r}")
        for r in range(4): P.e(f"v_fma_f32 v{O+8*row+r}, -v{c2+1}, v{VA+12+r}, v{O+8*row+r}\nv_fma_f32 v{O+8*row+4+r}, v{c2+1}, v{VA+8+r}, v{O+8*row+4+r}")
        P.add(rest.pop(0))
        for z in range(4): P.e(f"v_cvt_pk_bf16_f32 v{24+4*row+z}, v{O+8*row+2*z}, v{O+8*row+2*z+1}")
        P.e(f"ds_write_b128 {'v11' if row else 'v6'}, {vr(24+4*row,4)}")
    P.e(f"""
    s_lshl_b32 {sE1}, {sW}, 4
    s_mul_i32 {sE1}, {sE1}, 28672
    s_lshl_b32 {sE3}, {sK}, 10
    s_add_u32 {sE1}, {sE1}, {sE3}
    s_lshl_b32 {sE3}, {sP}, 7
    s_add_u32 {sE1}, {sE1}, {sE3}
    s_add_u32 {sE1}, {sE1}, {TBUF}
    s_add_u32 {sE3}, {sE1}, {8*28672}
    s_waitcnt lgkmcnt(0)
    ds_read_b128 v[24:27], v7
    ds_read_b128 v[28:31], v7 offset:1024
    """)
    P.e(f"buffer_store_dwordx4 v[24:27], v8, {WS_}, {sE1} offen sc1", 'T')
    P.e(f"buffer_store_dwordx4 v[28:31], v8, {WS_}, {sE3} offen sc1", 'T')
    assert len(rest) == 2
    P.e(f"s_mul_i32 {sE1}, {sE}, 57344\ns_mul_i32 {sE2}, {sW}, 14336\ns_add_u32 {sE1}, {sE1}, {sE2}\ns_add_u32 {sE1}, {sE1}, {IFT}\ns_add_u32 {sE2}, {sE2}, {IFL}")
    P.add(rest)
    stamp(P, 9)
    GA = [32 + 16 * i for i in range(4)]
    D1, SA = 96, 112
    XR, XU, DPF = 128, 136, 152
    for u in range(4, HD): P.add(hload(u))
    pre = lines(f"""
    v_and_b32 v23, 31, v0
    v_mul_u32_u24 v2, 57344, v23
    v_lshrrev_b32 v24, 5, v0
    v_lshl_add_u32 v2, v24, 4, v2
    s_mul_i32 {sDB0}, {sN2}, 896
    s_lshl_b32 {sE1}, {sE}, 7
    s_add_u32 {sDB0}, {sDB0}, {sE1}
    s_and_b32 {sE1}, {sW}, 1
    s_lshl_b32 {sE2}, {sE1}, 6
    s_add_u32 {sDB0}, {sDB0}, {sE2}
    s_mul_i32 {sE1}, {sE1}, 28672
    s_add_u32 {sE1}, {sE1}, {IFL}
    v_add_u32 v3, {sE1}, {L16}
    v_bfe_u32 v25, v0, 2, 3
    v_lshlrev_b32 v4, 7, v25
    v_bfe_u32 v25, v0, 4, 1
    v_xor_b32 v25, v25, v24
    v_lshl_add_u32 v4, v25, 6, v4
    v_and_b32 v25, 3, v0
    v_lshl_add_u32 v4, v25, 4, v4
    s_lshr_b32 {sE1}, {sW}, 1
    s_mul_i32 {sE1}, {sE1}, 28672
    s_add_u32 {sE1}, {sE1}, {TLD}
    v_add_u32 v4, {sE1}, v4
    """)
    for lam in range(1, 4):
        pre += [f"s_xor_b32 {sE1}, {sW}, {lam}", f"s_mul_i32 {sE1}, {sE1}, 12288", f"s_add_u32 {sE1}, {sE1}, {IMG+(lam-1)*4096}", f"v_add_u32 v{4+lam}, {sE1}, {L16}"]
    pre += [f"s_mul_i32 {sE1}, {sW}, 12288", f"s_add_u32 {sE1}, {sE1}, {IMG}", f"v_add_u32 v8, {sE1}, {L16}"]
    pre += [f"s_mul_i32 {sW2A}, {sT}, 57344", f"s_mul_i32 {sW2B}, {sW}, 14336", f"s_add_u32 {sW2A}, {sW2A}, {sW2B}", f"s_add_u32 {sW2A}, {sW2A}, {TBUF}", f"s_add_u32 {sW2B}, {sW2B}, {TLD}"]
    pre += [f"s_mov_b32 {sDB1}, {f32bits(-math.log2(math.e)):#x}", f"s_add_u32 {sE4}, {sE4}, {HF1-HF0}"]
    pre += [f"s_lshl_b32 {sE1}, {sW}, 12", f"s_lshl_b32 {sE2}, {sBID}, 4", f"s_add_u32 {sE1}, {sE1}, {sE2}", f"s_add_u32 {sE1}, {sE1}, {TF}"]
    pre += [f"s_lshr_b32 {sE2}, {sT}, 3", f"s_lshl_b32 {sE2}, {sE2}, 12", f"s_and_b32 {sE3}, {sW}, 1", f"s_mul_i32 {sE3}, {sE3}, 1792", f"s_add_u32 {sE2}, {sE2}, {sE3}", f"s_add_u32 {sE2}, {sE2}, {TF}"]
    pre += ["v_min_u32 v9, 47, v0", "v_lshlrev_b32 v9, 4, v9"]
    spine = []
    for u in range(28):
        for lam in range(4):
            th, dt = lam >> 1, lam & 1
            spine.append(f"{M32} {vr(GA[lam],16)}, {ar(8*u+4*dt,4)}, {vr(HB+8*((u+4)%HD)+4*th,4)}, {vr(GA[lam],16) if u else 0}")
    n0 = len(spine)
    for z in range(28): spine.append(f"{M32} {vr(D1,16)}, {ar(112+4*z,4)}, {ar(4*z,4)}, {vr(D1,16) if z else 0}")
    last = len(spine) - 1
    ms = [(0, 12, x) for x in pre]
    tfl = [f"buffer_load_dword v10, {L16}, {WS_}, {sE2} offen sc1", f"buffer_load_dword v11, v9, {WS_}, {sE2} offen offset:1024 sc1"]
    hl = [(12, 13, h0l)]
    for u in range(HD, 28):
        if u == 12: hl.append((16, 17, flag_set(sE1, 'T')))
        if u == 14: hl.append((24, 25, poll_check('h1', [h0l], [14])))
        if u == 16:
            hl.append((32, 34, [f"buffer_load_dwordx4 {vr(XR,4)}, v2, {X_}, {sDB0} offen"]))
            hl.append((32, 34, [f"buffer_load_dwordx4 {vr(XR+4,4)}, v2, {X_}, {sDB0} offen offset:32"]))
            hl.append((32, 34, [f"s_mov_b32 {sE3}, {DP}", f"buffer_load_dwordx4 {vr(DPF,4)}, {L16}, {TAB_}, {sE3} offen"]))
            hl.append((32, 34, [f"buffer_load_dwordx4 {vr(DPF+4,4)}, {L16}, {TAB_}, {sE3} offen offset:1024"]))
        if u == 22: hl.append((56, 57, tfl))
        for k, grp in enumerate(hload(u)): hl.append((4 * (u - HD) + 1 + 2 * k, 4 * (u - HD) + 3 + 2 * k, grp))
    hl.sort(key=lambda x: x[0])
    TG = 80
    hl.append((TG, TG, poll_check('t', tfl, [10, 11])))
    for u in range(14):
        hl.append((TG + 2 * u, TG + 2 * u + 2, [I(f"s_add_u32 {sC}, {sW2A}, {u*1024}")] + dma(WS_, L16, sC, (sW2B, u * 1024), 0, 'Tl', 'sc1')))
    rd_ = [(13, 13, [WaitVM('iF'), I('s_barrier')])]
    for z in range(28): rd_.append((max(13, 4 * (z >> 1) + 3), 4 * (z >> 1) + 18, I(f"ds_read_b128 {ar(4*z,4)}, v3 offset:{1024*z}", 'ifr')))
    for u in range(NW2R, 28):
        for x in w2_tr(u): rd_.append((60, 72, x))
    rd_.append((74, TG - 1, [I('s_waitcnt lgkmcnt(0)'), I('s_barrier')]))
    rd_.append((n0 - 1, n0 - 1, [WaitVM('Tl'), I('s_barrier')]))
    for z in range(28): rd_.append((n0 - 1, max(n0 - 1, n0 + z - 4), f"ds_read_b128 {ar(112+4*z,4)}, v4 offset:{1024*z}"))
    xs = []
    for qq in range(2):
        for z in range(2): xs.append((70, 100, f"v_permlane32_swap_b32 v{XR+4*qq+z}, v{XR+4*qq+2+z}"))
    for z in range(8):
        xs.append((70, 100, f"v_lshlrev_b32 v{XU+2*z}, 16, v{XR+z}"))
        xs.append((70, 100, f"v_and_b32 v{XU+2*z+1}, {sMASK}, v{XR+z}"))
    red = []
    for lam in range(1, 4):
        for q in range(4): red.append((n0 + 1, n0 + 6, I(f"ds_write_b128 v{4+lam}, {vr(GA[lam]+4*q,4)} offset:{1024*q}", 'pw')))
    red.append((n0 + 1, n0 + 8, [WaitLG('pw'), I('s_barrier')]))
    for lam in range(1, 4):
        for q in range(4): red.append((n0 + 1, n0 + 12, f"ds_read_b128 {vr(GA[lam]+4*q,4)}, v8 offset:{(lam-1)*4096+1024*q}"))
    Gq = GA[0]
    for quad in range(4):
        r = [4 * quad + k for k in range(4)]
        for lam in range(1, 4):
            for k in r: red.append((n0 + 1, last, f"v_add_f32 v{Gq+k}, v{Gq+k}, v{GA[lam]+k}"))
        T = GA[1]
        for k in r: red.append((n0 + 1, last, f"v_mul_f32 v{T+k}, {sDB1}, v{Gq+k}"))
        for k in r: red.append((n0 + 1, last, f"v_exp_f32 v{T+k}, v{T+k}"))
        for k in r: red.append((n0 + 1, last, f"v_add_f32 v{T+k}, 1.0, v{T+k}"))
        for k in r: red.append((n0 + 1, last, f"v_rcp_f32 v{T+k}, v{T+k}"))
        for k in r: red.append((n0 + 1, last, f"v_mul_f32 v{Gq+k}, v{Gq+k}, v{T+k}"))
    stm = [(4, 4, stamp_i(10)), (56, 56, stamp_i(11)), (n0 - 2, n0 - 2, stamp_i(12))] if STAMPS else []
    P.add(weave(spine, [ms, hl, rd_, xs, red, stm], cap=5, report=rep))
    for z in range(8): P.e(f"v_cvt_pk_bf16_f32 v{24+z}, v{D1+2*z}, v{D1+2*z+1}")
    for ss in range(2): P.e(f"{M32} {vr(SA,16)}, {vr(24+4*ss,4)}, {vr(DPF+4*ss,4)}, {vr(SA,16) if ss else 0}")
    for r in range(16): P.e(f"v_fma_f32 v{Gq+r}, v{SA+r}, v{Gq+r}, v{XU+r}")
    for z in range(8): P.e(f"v_cvt_pk_bf16_f32 v{24+z}, v{Gq+2*z}, v{Gq+2*z+1}")
    for qq in range(2):
        for z in range(2): P.e(f"v_permlane32_swap_b32 v{24+4*qq+z}, v{24+4*qq+2+z}")
    P.e(f"buffer_store_dwordx4 v[24:27], v2, {OUT_}, {sDB0} offen")
    P.e(f"buffer_store_dwordx4 v[28:31], v2, {OUT_}, {sDB0} offen offset:32")
    stamp_out(P, 13)

def build():
    rep = []
    P = Prog(); main(P, rep)
    P.raw("L_end:"); P.e("s_endpgm")
    aux(P)
    body = P.finalize() + "".join(slow_paths)
    print(P.stats, file=sys.stderr)
    for r in rep: print(r, sum(max(32, 8 + 4 * x) for x in r[1:]), file=sys.stderr)
    lbl = NAME + "_kernel"
    s = f"; @launch grid=({NAUX+NMAIN},1,1) block=(256,1,1) lds=163840\n"
    s += '.amdgcn_target "amdgcn-amd-amdhsa--gfx950"\n.text\n' + G.kernel_text(lbl, body)
    s += '.section .rodata,"a"\n' + G.descriptor(lbl) + tables()
    return s
if __name__ == "__main__":
    STAMPS = 'stamps' in sys.argv
    txt = build()
    open(sys.argv[1], "w").write(txt)
```

```python
import sys, math
import numpy as np
from asmlib import *
import gen as G
from gen import (NAME, HBUF, YBUF, TBUF, FT, IFT, CT, DP, TAB_SIZE, SLOT, X_, W1_, W3_, W2_, WR_, WI_, OUT_, WS_, TAB_, DBG_,
                 sW, sI, sJ, sP, sK, sT, sE, sN2, sMASK, sONES, sW4K, sA, sB, sC, sD, sDB0, sDB1, sH0, sH1, sW2A, sW2B,
                 vr, ar, XF, ACC, ABUF, L16, f32bits, bfbits, dma, tables)
NAUX = 32; NMAIN = 224
FLG = 0xA80000
YF, HF0, HF1, TF = FLG, FLG + 0x4000, FLG + 0x8000, FLG + 0xC000
STAMP = 0xA90000; WS_SIZE = 0xB00000
sBID = 's59'
sE1, sE2, sE3, sE4 = 's70', 's71', 's4', 's5'
M32 = "v_mfma_f32_32x32x16_bf16"; M16 = "v_mfma_f32_16x16x32_bf16"
STAMPS = False
SPIN = 100000
def stamp_i(n): return [I(f"s_memtime s[{72+2*n}:{73+2*n}]")] if STAMPS else []
def stamp(P, n): P.add(stamp_i(n))
EXFIL = None
def exfil_start(P):
    if EXFIL is None: return
    P.e(f"s_lshl_b32 {sA}, {sBID}, 2\ns_add_u32 {sA}, {sA}, {STAMP}\nv_mov_b32 v30, s6\nv_mov_b32 v31, 0\nbuffer_store_dword v30, v31, {WS_}, {sA} offen sc1")
def exfil_end(P, n):
    P.e(f"s_waitcnt vmcnt(0)\ns_memtime s[{72+2*n}:{73+2*n}]\ns_waitcnt lgkmcnt(0)")
    P.e(f"v_lshlrev_b32 v1, 2, v0\ns_mov_b32 {sA}, {STAMP}\nv_min_u32 v2, 31, v0\nv_lshlrev_b32 v2, 2, v2")
    for k in range(3): P.e(f"buffer_load_dword v{4+k}, v1, {WS_}, {sA} offen offset:{256*k} sc1")
    P.e(f"buffer_load_dword v7, v2, {WS_}, {sA} offen offset:768 sc1\ns_waitcnt vmcnt(0)")
    if EXFIL == 'own':
        for k in range(4): P.e(f"v_mov_b32 v{4+k}, s6")
        P.e(f"s_mov_b32 {sB}, 10000")
    elif EXFIL == 'min': P.e(f"s_mov_b32 {sB}, 10000")
    else:
        a, b = EXFIL.split('-')
        P.e(f"s_sub_u32 {sB}, s{72+2*int(b)}, s{72+2*int(a)}\ns_lshr_b32 {sB}, {sB}, 2\ns_add_u32 {sB}, {sB}, 10000")
    P.e("s_mov_b32 s3, 0")
    P.raw("L_exf:", sync=True)
    P.e(f"""s_memrealtime s[4:5]
    s_waitcnt lgkmcnt(0)
    v_sub_u32 v8, s4, v4
    v_sub_u32 v9, s4, v5
    v_sub_u32 v10, s4, v6
    v_sub_u32 v11, s4, v7
    v_max3_u32 v8, v8, v9, v10
    v_max_u32 v8, v8, v11
    v_cmp_le_u32 vcc, {sB}, v8
    s_cbranch_vccnz L_end
    s_add_u32 s3, s3, 1
    s_cmp_lt_u32 s3, 100000
    s_cbranch_scc1 L_exf""")
def stamp_out(P, n):
    if EXFIL is not None: return exfil_end(P, n)
    if not STAMPS: return
    P.e("s_waitcnt vmcnt(0)")
    P.e(f"s_memtime s[{72+2*n}:{73+2*n}]\ns_memrealtime s[4:5]\ns_waitcnt lgkmcnt(0)")
    P.e(f"s_lshl_b32 {sA}, {sBID}, 2\ns_add_u32 {sA}, {sA}, {sW}\ns_lshl_b32 {sA}, {sA}, 6\ns_add_u32 {sA}, {sA}, {STAMP}")
    P.e("v_mov_b32 v2, 0")
    for k in range(n + 1):
        P.e(f"v_mov_b32 v3, s{72+2*k}\nbuffer_store_dword v3, v2, {WS_}, {sA} offen offset:{4*k}")
    P.e(f"v_mov_b32 v3, s6\nbuffer_store_dword v3, v2, {WS_}, {sA} offen offset:56")
    P.e(f"v_mov_b32 v3, s4\nbuffer_store_dword v3, v2, {WS_}, {sA} offen offset:60")

slow_paths = []
def poll_check(name, loads, regs):
    t = regs[0]
    red = [f"v_min_u32 v{t}, v{t}, v{r}" for r in regs[1:]]
    slow_paths.append(f"L_slow_{name}:\n    s_mov_b32 s3, 0\nL_retry_{name}:\n" + "".join(f"    {x}\n" for x in loads) + "    s_waitcnt vmcnt(0)\n" +
                      "".join(f"    {x}\n" for x in red) +
                      f"    v_cmp_eq_u32 vcc, 0, v{t}\n    s_add_u32 s3, s3, 1\n    s_cbranch_vccz L_ok_{name}\n    s_cmp_lt_u32 s3, {SPIN}\n"
                      f"    s_cbranch_scc1 L_retry_{name}\n    s_branch L_ok_{name}\n")
    return [I(x) for x in red] + [I(f"v_cmp_eq_u32 vcc, 0, v{t}"), I(f"s_cbranch_vccnz L_slow_{name}"), Raw(f"L_ok_{name}:")]
def flag_set(soff, tags, tmp=31):
    return [WaitVM(tags), I(f"v_mov_b32 v{tmp}, 1"), I(f"v_mov_b32 v{tmp-1}, 0"), I("s_mov_b64 exec, 1"),
            I(f"buffer_store_dword v{tmp}, v{tmp-1}, {WS_}, {soff} offen sc1"), I("s_mov_b64 exec, -1")]

def dbslot(d, c): return ([9, 0, 1, 2, 3, 4, 5] if d == 0 else [6, 9, 0, 1, 2, 3, 4])[c]
SCR = 143360
def db_dma(d, c):
    base = dbslot(d, c) * SLOT; koff = 64 * c * 3584 + 128 * d; tag = f"db{d}_{c}"
    return [[I(f"s_add_u32 {sA}, {sDB0}, {koff}")] + dma(W1_, 'v4', sA, (sW4K, base), 0, tag),
            [I(f"s_add_u32 {sB}, {sDB1}, {koff}")] + dma(W1_, 'v4', sB, None, 1024, tag),
            dma(W3_, 'v4', sA, (sW4K, base + 2048), 0, tag), dma(W3_, 'v4', sB, None, 1024, tag)]
def db_tr(d, s, m, fb, dst, tag=None):
    c, q = s >> 2, s & 3
    off = dbslot(d, c) * SLOT + q * 4096 + m * 2048
    win, off = off >> 16, off & 0xffff
    base = f"v{11 + 2 * win + fb}"
    return [I(f"ds_read_b64_tr_b16 {ar(dst, 2)}, {base} offset:{off}", tag), I(f"ds_read_b64_tr_b16 {ar(dst + 2, 2)}, {base} offset:{off + 512}", tag)]
NW2R = 20
STG = (5, 7, 8)
def w2_lds(u):
    if u < NW2R: return STG[(u >> 1) % 3] * SLOT + (u & 1) * 2048
    v = u - NW2R
    return (1 + (v >> 1)) * SLOT + (v & 1) * 2048
def w2_dma(u):
    s = 8 * (u % 14) + 4 * (u // 14); tag = f"w2_{u}"
    return [[I(f"s_add_u32 {sC}, {sW2A}, {s * 16 * 896}")] + dma(W2_, 'v5', sC, (sW4K, w2_lds(u)), 0, tag),
            [I(f"s_add_u32 {sD}, {sW2B}, {s * 16 * 896}")] + dma(W2_, 'v5', sD, None, 1024, tag)]
def w2_tr(u):
    off = w2_lds(u) - (5 * SLOT if u < NW2R else SLOT)
    o = []
    for dt in range(2):
        o += [I(f"ds_read_b64_tr_b16 {ar(8*u+4*dt, 2)}, v{17+dt} offset:{off}", f"w2r_{u}"),
              I(f"ds_read_b64_tr_b16 {ar(8*u+4*dt+2, 2)}, v{17+dt} offset:{off+1024}", f"w2r_{u}")]
    return o
def lines(t): return [x.strip() for x in t.strip().split('\n') if x.strip()]

def aux(P):
    P.raw("L_aux:", sync=True)
    P.e(f"""
    s_cmp_lg_u32 s2, 0
    s_cbranch_scc1 L_end
    v_mov_b32 v4, 0
    v_mov_b32 v5, 0
    v_mov_b32 v6, 0
    v_mov_b32 v7, 0
    s_lshl_b32 {sA}, {sW}, 14
    s_add_u32 {sA}, {sA}, {FLG}
    s_waitcnt lgkmcnt(0)
    """)
    for k in range(16):
        P.e(f"buffer_store_dwordx4 v[4:7], {L16}, {WS_}, {sA} offen offset:{(k & 3) * 1024} sc1")
        if k & 3 == 3: P.e(f"s_add_u32 {sA}, {sA}, 4096")
    P.e(f"""
    v_mov_b32 v8, 1
    s_lshl_b32 {sA}, {sW}, 2
    s_waitcnt vmcnt(0)
    s_mov_b64 exec, 1
    buffer_store_dword v8, v4, {DBG_}, {sA} offen sc1
    s_endpgm
    """)

def main(P, rep):
    if STAMPS or EXFIL: P.e("s_memrealtime s[6:7]")
    stamp(P, 0)
    P.e(f"s_cmp_ge_u32 s2, {NAUX+NMAIN}\ns_cbranch_scc1 L_end")
    for srd, off in ((8, 0), (12, 32), (16, 40), (36, 72), (44, 64), (20, 48), (24, 8), (28, 16), (32, 56)):
        P.e(f"s_load_dwordx2 s[{srd}:{srd+1}], s[0:1], {off}")
    P.e("s_getpc_b64 s[40:41]\ns_add_u32 s40, s40, TABS@rel32@lo+4\ns_addc_u32 s41, s41, TABS@rel32@hi+12")
    for srd, size in ((8, 1835008), (12, 1605632), (16, 1605632), (20, 1605632), (24, 921600), (28, 921600), (32, 1835008), (36, WS_SIZE), (40, TAB_SIZE), (44, 256)):
        P.e(f"s_mov_b32 s{srd+2}, {size}\ns_mov_b32 s{srd+3}, 0x20000")
    P.e(f"""
    v_lshrrev_b32 v2, 6, v0
    v_and_b32 v0, 63, v0
    v_readfirstlane_b32 {sW}, v2
    v_lshlrev_b32 {L16}, 4, v0
    s_cmp_lt_u32 s2, {NAUX}
    s_cbranch_scc1 L_aux
    s_sub_u32 {sBID}, s2, {NAUX}
    s_and_b32 {sP}, {sBID}, 7
    s_lshr_b32 {sK}, {sBID}, 3
    s_and_b32 {sA}, {sK}, 3
    s_lshr_b32 {sE}, {sK}, 2
    s_lshr_b32 {sI}, {sP}, 1
    s_lshl_b32 {sI}, {sI}, 2
    s_add_u32 {sI}, {sI}, {sA}
    s_and_b32 {sJ}, {sP}, 1
    s_mul_i32 {sJ}, {sJ}, 7
    s_add_u32 {sJ}, {sJ}, {sE}
    s_lshl_b32 {sT}, {sP}, 2
    s_add_u32 {sT}, {sT}, {sA}
    s_lshl_b32 {sN2}, {sI}, 2
    s_add_u32 {sN2}, {sN2}, {sW}
    s_lshl_b32 {sW4K}, {sW}, 12
    s_mov_b32 {sMASK}, 0xffff0000
    s_mov_b32 {sONES}, 0x3f803f80
    v_lshrrev_b32 v23, 3, v0
    v_and_b32 v24, 7, v0
    v_lshrrev_b32 v25, 1, v23
    v_xor_b32 v26, v24, v25
    v_mul_u32_u24 v2, 57344, v23
    v_lshl_add_u32 v2, v26, 4, v2
    v_xor_b32 v3, 64, v2
    s_mul_i32 {sE1}, {sN2}, 896
    """)
    def xdma(c):
        return [[I(f"s_add_u32 {sC}, {sE1}, {rb*(8*57344-1024) + c*128}")] + dma(X_, 'v3' if rb & 1 else 'v2', sC, (sW4K, c * SLOT) if rb == 0 else None, rb * 1024, f'x{c}') for rb in range(4)]
    setup = lines(f"""
    v_mul_u32_u24 v4, 3584, v23
    v_mul_u32_u24 v5, 896, v23
    v_and_b32 v25, 1, v25
    v_lshlrev_b32 v25, 2, v25
    v_xor_b32 v26, v24, v25
    v_lshl_add_u32 v4, v26, 4, v4
    v_lshl_add_u32 v5, v26, 4, v5
    s_mul_i32 {sDB0}, {sW}, {16*3584}
    s_lshl_b32 {sA}, {sJ}, 8
    s_add_u32 {sDB0}, {sDB0}, {sA}
    s_add_u32 {sDB1}, {sDB0}, {8*3584-1024}
    v_and_b32 v23, 31, v0
    v_lshlrev_b32 v24, 7, v23
    v_add_u32 v24, {sW4K}, v24
    v_bfe_u32 v25, v0, 1, 3
    v_lshrrev_b32 v26, 5, v0
    v_xor_b32 v25, v25, v26
    v_lshl_add_u32 v6, v25, 4, v24
    v_xor_b32 v7, 32, v6
    v_xor_b32 v8, 64, v6
    v_xor_b32 v9, 0x60, v6
    v_add_u32 v10, {7*SLOT}, {L16}
    v_bfe_u32 v24, v0, 2, 2
    v_lshlrev_b32 v23, 7, v24
    v_bfe_u32 v25, v0, 4, 1
    v_lshl_add_u32 v23, v25, 5, v23
    v_and_b32 v25, 3, v0
    v_lshl_add_u32 v23, v25, 3, v23
    v_bfe_u32 v24, v0, 3, 1
    v_lshl_add_u32 v11, v24, 6, v23
    v_lshl_add_u32 v11, v26, 10, v11
    v_xor_b32 v12, 64, v11
    v_add_u32 v13, 0x10000, v11
    v_add_u32 v14, 0x10000, v12
    v_add_u32 v15, 0x20000, v11
    v_add_u32 v16, 0x20000, v12
    s_and_b32 {sA}, {sW}, 1
    v_xor_b32 v24, {sA}, v24
    v_lshl_add_u32 v17, v24, 6, v23
    v_lshl_add_u32 v17, v26, 9, v17
    s_add_u32 {sA}, {sW4K}, {5*SLOT}
    v_add_u32 v17, {sA}, v17
    v_xor_b32 v18, 64, v17
    s_mul_i32 {sW2A}, {sW}, {16*896}
    s_lshl_b32 {sA}, {sE}, 7
    s_add_u32 {sW2A}, {sW2A}, {sA}
    s_add_u32 {sW2B}, {sW2A}, {8*896-1024}
    s_mul_i32 {sH0}, {sN2}, {112*1024}
    s_lshl_b32 {sA}, {sJ}, 13
    s_add_u32 {sH0}, {sH0}, {sA}
    s_add_u32 {sH0}, {sH0}, {HBUF}
    s_add_u32 {sH1}, {sH0}, 4096
    v_mov_b32 v28, 0
    v_mov_b32 v29, 0
    v_mov_b32 v30, 0
    v_mov_b32 v31, 0
    """)
    setup += lines(f"""
    v_bfe_u32 v23, v0, 2, 1
    v_cmp_eq_u32 vcc, v23, v26
    v_bfe_u32 v23, v0, 3, 1
    v_and_b32 v24, 3, v0
    v_lshl_add_u32 v23, v23, 2, v24
    v_cndmask_b32 v23, 8, v23, vcc
    v_and_b32 v24, 1, v0
    v_lshlrev_b32 v24, 4, v24
    v_lshlrev_b32 v24, v24, 0x3f80
    v_lshrrev_b32 v23, 1, v23
    v_bfe_u32 v25, v0, 4, 1
    v_lshl_add_u32 v23, v25, 3, v23
    """)
    for z in range(8):
        setup += [f"v_cmp_eq_u32 vcc, {z if z < 4 else z + 4}, v23", f"v_cndmask_b32 v25, 0, v24, vcc", f"v_accvgpr_write_b32 a{16+z}, v25"]
    setup = [x.replace("v_lshlrev_b32 v24, v24, 0x3f80", "v_mov_b32 v25, 0x3f80\nv_lshlrev_b32 v24, v24, v25") for x in setup]
    setup = sum([x.split('\n') for x in setup], [])
    P.e("s_waitcnt lgkmcnt(0)")
    exfil_start(P)
    first = xdma(0) + xdma(1) + xdma(2) + xdma(3)
    k = 0
    for gi, grp in enumerate(first):
        P.add(grp)
        n = (len(setup) * (gi + 1)) // len(first)
        P.add(setup[k:n]); k = n
    stamp(P, 1)
    later = xdma(4) + xdma(5) + xdma(6) + db_dma(0, 0) + db_dma(0, 1) + db_dma(0, 2) + db_dma(0, 3)
    def rd(c): return [I(f"ds_read_b128 {vr(XF+16*c+4*q, 4)}, v{6+q} offset:{(c & 3) * SLOT}", f"xr{c}") for q in range(4)]
    P.waitvm('x0'); P.add(rd(0))
    for c in range(7):
        dots = []
        for r in range(16):
            x = XF + 16 * c + r
            dots += [f"v_dot2c_f32_bf16 v{28+(r&1)}, {sONES}, v{x}", f"v_dot2c_f32_bf16 v{30+(r&1)}, v{x}, v{x}"]
        for g in range(4):
            P.add(later[4 * c + g])
            if g == 2 and c < 6:
                if c == 3: P.add([f"v_add_u32 v{6+q}, 0x10000, v{6+q}" for q in range(4)])
                P.waitvm(f'x{c+1}'); P.add(rd(c + 1))
            P.add(dots[8 * g:8 * g + 8])
    stamp(P, 2)
    CM = 240; IDT = ACC[4]
    P.e(f"""
    s_nop 2
    v_add_f32 v28, v28, v29
    v_add_f32 v30, v30, v31
    v_mov_b32 v29, v28
    v_mov_b32 v31, v30
    v_permlane32_swap_b32 v28, v29
    v_permlane32_swap_b32 v30, v31
    v_add_f32 v28, v28, v29
    v_add_f32 v30, v30, v31
    v_mul_f32 v19, {f32bits(-1/448):#x}, v28
    v_mul_f32 v30, {f32bits(1/448):#x}, v30
    """)
    for r in range(16): P.e(f"v_mov_b32 v{CM+r}, v19")
    def ident(pp):
        return [f"{M32} {vr(IDT,16)}, {ar(16,4)}, {vr(XF+8*pp,4)}, {vr(CM,16)}", f"{M32} {vr(IDT,16)}, {ar(20,4)}, {vr(XF+8*pp+4,4)}, {vr(IDT,16)}"]
    def identcvt(pp): return [f"v_cvt_pk_bf16_f32 v{XF+8*pp+z}, v{IDT+2*z}, v{IDT+2*z+1}" for z in range(8)]
    P.add(ident(0))
    P.waitvm(['db0_0', 'db0_1']); P.e("s_barrier")
    tiles = ((0, 0, ACC[0]), (1, 0, ACC[2]), (0, 1, ACC[1]), (1, 1, ACC[3]))
    for t, (m, fb, acc) in enumerate(tiles): P.add(db_tr(0, 0, m, fb, ABUF + 4 * t))
    P.e(f"""
    v_fma_f32 v30, -v19, v19, v30
    v_max_f32 v30, 0, v30
    v_add_f32 v21, {f32bits(1e-5):#x}, v30
    v_rsq_f32 v29, v21
    v_and_b32 v23, 31, v0
    s_lshl_b32 {sA}, {sW}, 7
    s_add_u32 {sA}, {sA}, {SCR}
    v_lshl_add_u32 v23, v23, 2, {sA}
    ds_write_b32 v23, v29
    v_mul_f32 v20, {f32bits(-math.log2(math.e)):#x}, v29
    v_lshrrev_b32 v23, 5, v0
    v_lshl_add_u32 v19, v23, 4, {sA}
    """)
    P.add(identcvt(0))
    stamp(P, 3)
    spine = []; ix = {}
    for s in range(28):
        for t, (m, fb, acc) in enumerate(tiles):
            ix[s, t] = len(spine)
            spine.append(f"{M32} {vr(acc,16)}, {ar(ABUF+16*(s&1)+4*t,4)}, {vr(XF+4*s,4)}, {vr(acc,16) if s else 0}")
            if s % 2 == 0 and t == 1 and s < 26:
                ix['id', s // 2 + 1] = len(spine); spine += ident(s // 2 + 1)
    n0 = len(spine)
    DA = ACC[5]
    for s in range(28):
        ix['d', s] = len(spine)
        spine.append(f"{M32} {vr(DA,16)}, {vr(XF+4*s,4)}, {ar(ABUF+16*((s>>2)&1)+4*(s&3),4)}, {vr(DA,16) if s else 0}")
    n1 = len(spine)
    Pp, Q = ACC[4], ACC[5]
    def setof(k): return ABUF + 16 * (((k >> 1) + 1) & 1) + 8 * (k & 1)
    for k in range(56):
        half, s = divmod(k, 28)
        accs = (ACC[0], ACC[2]) if half == 0 else (ACC[4], ACC[5])
        for m in range(2):
            ix['p', k, m] = len(spine)
            spine.append(f"{M32} {vr(accs[m],16)}, {ar(setof(k)+4*m,4)}, {vr(XF+4*s,4)}, {vr(accs[m],16) if s else 0}")
        if k == 3:
            ix['B'] = len(spine)
            for ss in range(2):
                spine.append(f"{M32} {vr(Pp,16)}, {vr(240+4*ss,4)}, {ar(4*ss,4)}, {vr(Pp,16) if ss else 0}")
                spine.append(f"{M32} {vr(Q,16)}, {vr(240+4*ss,4)}, {ar(8+4*ss,4)}, {vr(Q,16) if ss else 0}")
    n2 = len(spine); last = n2 - 1
    trs = []; bar = {}
    def macro(start, nxt, reads, tag, pre=None):
        if pre: trs.append((start, start, pre))
        for x in reads: trs.append((start, max(start, nxt - 3), x))
        trs.append((nxt - 1, nxt - 1, WaitLG(tag)))
    for s in range(1, 28):
        reads = sum([db_tr(0, s, m, fb, ABUF + 16 * (s & 1) + 4 * t, f"r{s}") for t, (m, fb, acc) in enumerate(tiles)], [])
        pre = None; st = ix[s - 1, 0] - 1
        if s in (8, 16, 24):
            c = s // 4
            pre = [WaitVM([f'db0_{c}', f'db0_{min(c+1,6)}'] + (['F'] if s == 24 else [])), I('s_barrier')]; bar[s] = st
        macro(st, ix[s, 0], reads, f"r{s}", pre)
    for mc in range(7):
        reads = [I(f"ds_read_b128 {ar(ABUF+16*(mc&1)+4*q,4)}, v10 offset:{(4*mc+q)*1024}", f"f{mc}") for q in range(4)]
        st = (ix[27, 0] if mc == 0 else ix['d', 4 * mc - 4]) - 1
        pre = None
        if mc == 1: pre = [I('s_barrier')]; bar['D'] = st
        macro(st, ix['d', 4 * mc], reads, f"f{mc}", pre)
    for mc in range(28):
        reads = []
        for k in (2 * mc, 2 * mc + 1):
            half, s = divmod(k, 28)
            for m in range(2): reads += db_tr(1, s, m, half, setof(k) + 4 * m, f"p{mc}")
        st = (ix['d', 24] if mc == 0 else ix['p', 2 * mc - 2, 0]) - 1
        pre = None
        if mc == 0: pre = [WaitVM([f'db1_{c}' for c in range(5)]), I('s_barrier')]; bar['D2'] = st
        if mc == 6: pre = [WaitVM(['db1_5', 'db1_6']), I('s_barrier')]; bar['E'] = st
        if mc == 21: pre = [I('s_barrier')]; bar['F'] = st
        macro(st, ix['p', 2 * mc, 0], reads, f"p{mc}", pre)
    idc = []
    for pp in range(1, 14):
        for x in identcvt(pp): idc.append((ix['id', pp] + 3, ix[2 * pp, 0] - 2, x))
    dm = []
    def put(groups, lo, step=2, slack=3):
        for k, grp in enumerate(groups): dm.append((lo + step * k, lo + step * k + slack, grp))
        return lo + step * len(groups)
    fset = [I(f"s_mul_i32 {sE1}, {sJ}, 28672"), I(f"s_add_u32 {sE1}, {sE1}, {FT}"), I(f"s_lshl_b32 {sE2}, {sW}, 10"), I(f"s_add_u32 {sE1}, {sE1}, {sE2}")]
    fd = [[I(f"s_add_u32 {sC}, {sE1}, {u*4096}")] + dma(TAB_, L16, sC, (sE2, 7 * SLOT + u * 4096), 0, 'F') for u in range(7)]
    g = put(db_dma(0, 4) + db_dma(0, 5) + db_dma(0, 6) + db_dma(1, 0), 0)
    g = put([fset + fd[0]] + fd[1:3], g)
    g = put(db_dma(1, 1) + db_dma(1, 2) + fd[3:], max(g, bar[8] + 1))
    g = put(db_dma(1, 3) + db_dma(1, 4), max(g, bar[16] + 1))
    dbgld = f"buffer_load_dword v27, v26, {DBG_}, 0 offen sc1"
    dm.append((g, g + 3, ["v_and_b32 v26, 3, v0", "v_lshlrev_b32 v26, 2, v26", I(dbgld)]))
    g = put(db_dma(1, 5) + db_dma(1, 6), max(g, bar[24] + 1))
    w2s = []
    g = max(g, bar['D'] + 1)
    when = {}
    for u in range(NW2R):
        if u == 2: g = max(g, bar['E'] + 1)
        if u >= 6: w2s.append((g, g + 2, [WaitLG(f'w2r_{u-6}')]))
        for grp in w2_dma(u):
            w2s.append((g, g + 2, grp)); g += 2
        when[u] = g
        if u >= 4:
            for x in [WaitVM(f'w2_{u-4}')] + w2_tr(u - 4): w2s.append((g, g + 2, x))
    for u in range(NW2R - 4, NW2R):
        g += 3
        for x in [WaitVM(f'w2_{u}')] + w2_tr(u): w2s.append((min(g, last), min(g + 2, last), x))
    print("w2 stream ends at gap", g, "of", last, file=sys.stderr)
    dm += w2s
    tb = lines(f"""
    v_bfe_u32 v23, v0, 2, 3
    v_lshlrev_b32 v22, 13, v23
    v_lshrrev_b32 v24, 5, v0
    v_lshl_add_u32 v22, v24, 6, v22
    v_and_b32 v25, 3, v0
    v_lshl_add_u32 v22, v25, 4, v22
    v_and_b32 v25, 1, v0
    v_lshl_add_u32 v23, v23, 1, v25
    v_sub_u32 v25, 32, v23
    v_cmp_eq_u32 vcc, 0, v23
    v_and_b32 v2, 2, v0
    v_lshlrev_b32 v24, 8, v24
    v_cndmask_b32 v25, v25, 16, vcc
    v_cmp_eq_u32 vcc, 0, v2
    v_add_u32 v24, {sN2}, v24
    v_cvt_f32_u32 v24, v24
    v_cndmask_b32 v23, v25, v23, vcc
    v_cvt_f32_u32 v23, v23
    v_mul_f32 v24, v23, v24
    v_mul_f32 v24, {f32bits(1/2048):#x}, v24
    v_mul_f32 v23, {f32bits(1/32):#x}, v23
    """)
    for ss in range(2):
        for z in range(4):
            for y in range(2):
                e = 2 * z + y; n1off = 16 * ss + 8 * (e >> 2) + (e & 3)
                tb += [f"v_mov_b32 v{2+y}, {f32bits(float(n1off)):#x}"]
            tb += ["v_fma_f32 v2, v23, v2, v24", "v_fma_f32 v3, v23, v3, v24", "v_fract_f32 v2, v2", "v_fract_f32 v3, v3",
                   "v_cos_f32 v6, v2", "v_cos_f32 v7, v3", "v_sin_f32 v8, v2", "v_sin_f32 v9, v3",
                   "v_cvt_pk_bf16_f32 v6, v6, v7", "v_cvt_pk_bf16_f32 v8, v8, v9",
                   f"v_accvgpr_write_b32 a{4*ss+z}, v6", f"v_accvgpr_write_b32 a{8+4*ss+z}, v8"]
    stb = [(0, n0 - 10, x) for x in tb]
    b0 = ix['B']
    for q in range(4): stb.append((n0 + 4, n1 - 4, f"ds_read_b128 {vr(ACC[4]+4*q,4)}, v19 offset:{32*q}"))
    for r in range(16): stb.append((n1 + 1, b0 - 2, f"v_mul_f32 v{DA+r}, v{ACC[4]+r}, v{DA+r}"))
    for z in range(8): stb.append((n1 + 1, b0 - 1, f"v_cvt_pk_bf16_f32 v{240+z}, v{DA+2*z}, v{DA+2*z+1}"))
    lo, hi = b0 + 6, b0 + 22
    for r in range(8):
        stb.append((lo, hi, f"v_add_f32 v{Pp+r}, v{Pp+r}, v{Q+8+r}"))
        stb.append((lo, hi, f"v_sub_f32 v{Pp+8+r}, v{Pp+8+r}, v{Q+r}"))
    for sub in range(2):
        o = 240 + 4 * sub
        for z in range(2):
            stb.append((lo, hi, f"v_cvt_pk_bf16_f32 v{o+z}, v{Pp+4*sub+2*z}, v{Pp+4*sub+2*z+1}"))
            stb.append((lo, hi, f"v_cvt_pk_bf16_f32 v{o+2+z}, v{Pp+8+4*sub+2*z}, v{Pp+8+4*sub+2*z+1}"))
    stb.append((lo, hi, [f"s_lshl_b32 {sE1}, {sJ}, 17", f"s_lshl_b32 {sE2}, {sN2}, 7"]))
    stb.append((lo, hi, [f"s_add_u32 {sE1}, {sE1}, {sE2}", f"s_add_u32 {sE1}, {sE1}, {YBUF}", f"s_add_u32 {sE2}, {sE1}, 65536"]))
    for sub in range(2):
        o = 240 + 4 * sub
        stb.append((lo, hi, f"v_permlane32_swap_b32 v{o}, v{o+2}"))
        stb.append((lo, hi, f"v_permlane32_swap_b32 v{o+1}, v{o+3}"))
    for sub in range(2):
        stb.append((lo, hi, I(f"buffer_store_dwordx4 {vr(240+4*sub,4)}, v22, {WS_}, {sE2 if sub else sE1} offen sc1", 'Y')))
    stb.append((hi, hi + 4, poll_check('dbg', [dbgld], [27])))
    stb.append((hi + 18, hi + 20, [f"s_lshl_b32 {sE1}, {sJ}, 10", f"s_lshl_b32 {sE2}, {sN2}, 4", f"s_add_u32 {sE1}, {sE1}, {sE2}", f"s_add_u32 {sE1}, {sE1}, {YF}"]))
    stb.append((hi + 20, hi + 22, flag_set(sE1, 'Y')))
    epi = []
    for x in G.epilogue(ACC[0], ACC[2], 0): epi.append((n0 + 1, n1 - 2, x))
    for x in G.epilogue(ACC[1], ACC[3], 1): epi.append((n1, ix['p', 32, 0], x))
    for x in G.epilogue(ACC[0], ACC[2], 2): epi.append((ix['p', 28, 0] + 2, last, x))
    YL, ZL, TL = 0, 8192, 0
    CC, SS, NS = ACC[1], ACC[3], 64
    WRr, WIr = 32, 40
    cp = []
    g = ix['p', 36, 0]
    hf = [f"s_lshl_b32 {sE1}, {sN2}, 8", f"s_lshl_b32 {sE2}, {sJ}, 4", f"s_add_u32 {sE3}, {sE1}, {sE2}", f"s_add_u32 {sE1}, {sE3}, {HF0}", f"s_add_u32 {sE3}, {sE3}, {HF1}"]
    yfl = f"buffer_load_dword v27, {L16}, {WS_}, {sE4} offen sc1"
    wset = lines(f"""
    s_lshr_b32 {sE4}, {sK}, 1
    s_lshl_b32 {sE4}, {sE4}, 10
    s_add_u32 {sE4}, {sE4}, {YF}
    v_bfe_u32 v23, v0, 3, 1
    s_lshl_b32 {sE1}, {sP}, 1
    v_add_u32 v23, {sE1}, v23
    v_sub_u32 v24, 32, v23
    v_cmp_eq_u32 vcc, 0, v23
    s_and_b32 {sE1}, {sW}, 1
    s_cmp_eq_u32 {sE1}, 0
    v_cndmask_b32 v24, v24, 16, vcc
    s_cselect_b64 vcc, -1, 0
    v_cndmask_b32 v23, v24, v23, vcc
    v_lshrrev_b32 v24, 4, v0
    v_lshl_add_u32 v23, v24, 7, v23
    v_mul_u32_u24 v3, 450, v23
    v_and_b32 v24, 7, v0
    v_lshl_add_u32 v3, v24, 1, v3
    v_lshrrev_b32 v23, 3, v0
    v_bfe_u32 v25, v0, 4, 2
    v_lshlrev_b32 v25, 1, v25
    v_xor_b32 v24, v24, v25
    v_lshlrev_b32 v2, 7, v23
    v_lshl_add_u32 v2, v24, 4, v2
    """)
    cp.append((g - 8, g, wset[:13]))
    for x in wset[13:]: cp.append((g - 8, g, x))
    for r in range(16): cp.append((g - 2, g + 2, f"v_mov_b32 v{WRr+r}, 0"))
    for tt in range(2):
        cp.append((g, g + 2, [f"s_xor_b32 {sE2}, {sW}, {tt}", f"s_mul_i32 {sE2}, {sE2}, {16*32*450}", f"s_lshl_b32 {sE1}, {sK}, 4", f"s_add_u32 {sE2}, {sE2}, {sE1}"]))
        for r in range(4):
            cp.append((g, g + 2, [f"s_add_u32 {sE1}, {sE2}, {r*14400+2}", f"buffer_load_short_d16_hi v{WRr+4*tt+r}, v3, {WR_}, {sE1} offen"]))
            cp.append((g, g + 2, f"buffer_load_short_d16_hi v{WIr+4*tt+r}, v3, {WI_}, {sE1} offen")); g += 1
    for tt in range(2):
        cp.append((g, g + 2, [f"s_xor_b32 {sE1}, {sW}, {tt}", f"s_lshl_b32 {sE1}, {sE1}, 12", f"s_add_u32 {sE1}, {sE1}, {CT}"]))
        for s in range(2):
            cp.append((g, g + 2, f"buffer_load_dwordx4 {vr(CC+8*tt+4*s,4)}, {L16}, {TAB_}, {sE1} offen offset:{2048*s}")); g += 1
            cp.append((g, g + 2, f"buffer_load_dwordx4 {vr(SS+8*tt+4*s,4)}, {L16}, {TAB_}, {sE1} offen offset:{2048*s+1024}")); g += 1
    cp.append((g, g + 2, hf)); cp.append((g, g + 2, flag_set(sE1, ['h0', 'h1'])))
    cp.append((g, g + 2, yfl))
    print("C prefetch ends at gap", g, "of", last, file=sys.stderr)
    stm = [(n0 - 1, n0 - 1, stamp_i(4)), (n1 - 1, n1 - 1, stamp_i(5)), (ix['p', 28, 0], ix['p', 28, 0], stamp_i(6))] if STAMPS else []
    P.add(weave(spine, [trs, idc, dm, stb, epi, cp, stm], cap=5, report=rep))
    stamp(P, 7)
    P.add(poll_check('y', [yfl], [27]))
    P.e(f"""
    s_lshl_b32 {sA}, {sK}, 3
    s_add_u32 {sA}, {sA}, {sP}
    s_lshl_b32 {sA}, {sA}, 13
    s_lshl_b32 {sB}, {sW}, 11
    s_add_u32 {sA}, {sA}, {sB}
    s_add_u32 {sA}, {sA}, {YBUF}
    """)
    P.add(dma(WS_, 'v2', sA, (sB, YL), 0, 'Yl', 'sc1')); P.add(dma(WS_, 'v2', sA, None, 1024, 'Yl', 'sc1'))
    P.e("s_barrier")
    IMG, TLD, IFL = SLOT, 106496, 106496
    P.e(f"s_mul_i32 {sE1}, {sE}, 57344\ns_mul_i32 {sE2}, {sW}, 14336\ns_add_u32 {sE1}, {sE1}, {sE2}\ns_add_u32 {sE1}, {sE1}, {IFT}\ns_add_u32 {sE2}, {sE2}, {IFL}")
    bulk = sum([w2_dma(u) for u in range(NW2R, 28)], []) + [[I(f"s_add_u32 {sC}, {sE1}, {u*1024}")] + dma(TAB_, L16, sC, (sE2, u * 1024), 0, 'iF') for u in range(14)]
    YFr, XA, ZF, VA, CO = 96, 112, 64 + 16, 128, 48
    sc = 2.0 / (2048 * 448)
    work = [ins(x) for x in G.epilogue(ACC[4], ACC[5], 3)]
    work += [ins(x) for x in lines(f"""
    v_lshrrev_b32 v23, 5, v0
    s_lshl_b32 {sA}, {sP}, 1
    v_add_u32 v23, {sA}, v23
    v_sub_u32 v24, 32, v23
    v_cmp_eq_u32 vcc, 0, v23
    v_and_b32 v25, 15, v0
    s_lshl_b32 {sA}, {sW}, 4
    v_cndmask_b32 v24, v24, 16, vcc
    v_add_u32 v25, {sA}, v25
    v_mul_u32_u24 v23, v23, v25
    v_mul_u32_u24 v24, v24, v25
    v_cvt_f32_u32 v23, v23
    v_cvt_f32_u32 v24, v24
    v_mul_f32 v23, {f32bits(1/2048):#x}, v23
    v_mul_f32 v24, {f32bits(1/2048):#x}, v24
    v_cos_f32 v{CO}, v23
    v_sin_f32 v{CO+1}, v23
    v_cos_f32 v26, v24
    v_sin_f32 v27, v24
    v_mul_f32 v{CO}, {f32bits(sc):#x}, v{CO}
    v_mul_f32 v{CO+1}, {f32bits(sc):#x}, v{CO+1}
    v_mul_f32 v26, {f32bits(sc):#x}, v26
    v_mul_f32 v27, {f32bits(sc):#x}, v27
    v_sub_f32 v28, 0, v{CO}
    v_sub_f32 v29, 0, v27
    v_cndmask_b32 v{CO+2}, v26, 0, vcc
    v_cndmask_b32 v{CO+3}, v27, 0, vcc
    v_cndmask_b32 v{CO+4}, v{CO+1}, 0, vcc
    v_cndmask_b32 v{CO+5}, v28, 0, vcc
    v_cndmask_b32 v{CO+6}, v29, v26, vcc
    v_cndmask_b32 v{CO+7}, v26, v27, vcc
    v_lshrrev_b32 v23, 2, v0
    v_lshlrev_b32 v4, 7, v23
    v_bfe_u32 v24, v0, 3, 2
    s_and_b32 {sA}, {sW}, 1
    v_xor_b32 v24, {sA}, v24
    v_lshl_add_u32 v4, v24, 5, v4
    v_and_b32 v24, 3, v0
    v_lshl_add_u32 v4, v24, 3, v4
    v_xor_b32 v9, 64, v4
    s_lshl_b32 {sB}, {sA}, 12
    s_lshr_b32 {sE4}, {sW}, 1
    s_lshl_b32 {sE4}, {sE4}, 11
    s_add_u32 {sB}, {sB}, {sE4}
    s_lshl_b32 {sA}, {sA}, 3
    s_add_u32 {sB}, {sB}, {sA}
    s_add_u32 {sB}, {sB}, {ZL}
    v_add_u32 v12, {sB}, {L16}
    v_xor_b32 v10, 8, v12
    v_and_b32 v23, 15, v0
    v_bfe_u32 v24, v0, 4, 1
    s_lshr_b32 {sA}, {sP}, 2
    v_xor_b32 v24, {sA}, v24
    v_lshlrev_b32 v24, 2, v24
    v_lshrrev_b32 v25, 5, v0
    v_lshl_add_u32 v24, v25, 1, v24
    v_and_b32 v25, 7, v0
    v_xor_b32 v24, v24, v25
    v_lshlrev_b32 v6, 7, v23
    v_lshl_add_u32 v6, v24, 4, v6
    s_lshl_b32 {sA}, {sW}, 11
    s_add_u32 {sA}, {sA}, {TL}
    v_add_u32 v6, {sA}, v6
    v_xor_b32 v11, 16, v6
    v_lshrrev_b32 v23, 3, v0
    v_xor_b32 v24, v23, v25
    v_lshlrev_b32 v7, 7, v23
    v_lshl_add_u32 v7, v24, 4, v7
    v_add_u32 v7, {sA}, v7
    v_mul_u32_u24 v8, 28672, v23
    v_lshl_add_u32 v8, v25, 4, v8
    v_subrev_u32 v17, {4*SLOT}, v17
    v_subrev_u32 v18, {4*SLOT}, v18
    """)]
    work += [ins(f"v_xor_b32 v{NS+r}, 0x80008000, v{SS+r}") for r in range(16)]
    work += [ins(x) for x in lines(f"""
    v_and_b32 v13, 15, v0
    v_min_u32 v13, 13, v13
    v_bfe_u32 v14, v0, 4, 1
    v_lshlrev_b32 v14, 8, v14
    v_lshl_add_u32 v13, v13, 4, v14
    s_lshl_b32 {sE4}, {sT}, 9
    s_add_u32 {sE4}, {sE4}, {HF0}
    """)]
    h0l = f"buffer_load_dword v14, v13, {WS_}, {sE4} offen sc1"
    work.append(I(h0l))
    nb = 18; k = 0
    for gi in range(nb):
        P.add(bulk[gi]); n = (len(work) * (gi + 1)) // nb; P.add(work[k:n]); k = n
    stamp(P, 8)
    P.waitvm('Yl'); P.e("s_barrier")
    for part in range(2):
        for s in range(2):
            for t in range(2):
                P.e(f"ds_read_b64_tr_b16 {vr(YFr+8*part+4*s+2*t,2)}, {'v9' if part else 'v4'} offset:{YL+(32*s+16*t)*128}")
    P.add(bulk[nb]); P.add(bulk[nb + 1])
    for k4 in range(4):
        s, term = k4 >> 1, k4 & 1
        for part in range(2):
            for tt in range(2):
                acc = XA + 8 * part + 4 * tt
                if term == 0: A, B = CC + 8 * tt + 4 * s, YFr + 8 * part + 4 * s
                else: A, B = (NS if part else SS) + 8 * tt + 4 * s, YFr + 8 * (1 - part) + 4 * s
                P.e(f"{M16} {vr(acc,4)}, {vr(A,4)}, {vr(B,4)}, {vr(acc,4) if k4 else 0}")
        P.add(bulk[nb + 2 + k4])
    for r in range(8): P.e(f"v_mul_f32 v{ZF+r}, v{XA+r}, v{WRr+r}\nv_mul_f32 v{ZF+8+r}, v{XA+r}, v{WIr+r}")
    P.add(bulk[nb + 6])
    for r in range(8): P.e(f"v_fma_f32 v{ZF+r}, -v{XA+8+r}, v{WIr+r}, v{ZF+r}\nv_fma_f32 v{ZF+8+r}, v{XA+8+r}, v{WRr+r}, v{ZF+8+r}")
    P.add(bulk[nb + 7])
    for z in range(8): P.e(f"v_cvt_pk_bf16_f32 v{24+z}, v{ZF+2*z}, v{ZF+2*z+1}")
    for part in range(2):
        P.e(f"ds_write_b64 v12, {vr(24+4*part,2)} offset:{1024*part}\nds_write_b64 v10, {vr(26+4*part,2)} offset:{1024*part}")
    P.add(flag_set(sE3, ['h2', 'h3'], tmp=16))
    P.add(poll_check('h0', [h0l], [14]))
    HB, HD = 176, 8
    P.e(f"""
    s_lshr_b32 {sA}, {sW}, 1
    s_lshl_b32 {sB}, {sT}, 1
    s_add_u32 {sN2}, {sA}, {sB}
    s_mul_i32 {sH0}, {sN2}, {112*1024}
    s_xor_b32 {sA}, {sN2}, 1
    s_mul_i32 {sH1}, {sA}, {112*1024}
    s_lshl_b32 {sA}, {sW}, 10
    s_add_u32 {sA}, {sA}, {HBUF}
    s_add_u32 {sH0}, {sH0}, {sA}
    s_add_u32 {sH1}, {sH1}, {sA}
    """)
    def hload(u):
        s = 8 * (u % 14) + 4 * (u // 14); b = HB + 8 * ((u + 4) % HD)
        return [[I(f"s_add_u32 {sA}, {sH0}, {s*1024}"), I(f"buffer_load_dwordx4 {vr(b,4)}, {L16}, {WS_}, {sA} offen sc1")],
                [I(f"s_add_u32 {sB}, {sH1}, {s*1024}"), I(f"buffer_load_dwordx4 {vr(b+4,4)}, {L16}, {WS_}, {sB} offen sc1")]]
    hq = sum([hload(u) for u in range(4)], [])
    P.add(hq[0]); P.add(hq[1])
    P.e("s_waitcnt lgkmcnt(0)\ns_barrier")
    ZF2 = 96
    for f in range(8): P.e(f"ds_read_b128 {vr(ZF2+4*f,4)}, {L16} offset:{ZL+1024*f}")
    rest = hq[2:] + bulk[nb + 8:]
    for k4 in range(4):
        s, term = k4 >> 1, k4 & 1
        for c in range(2):
            for part in range(2):
                acc = VA + 8 * c + 4 * part
                A = ZF2 + 16 * c + 8 * s + 4 * term
                B = ((CC, NS), (SS, CC))[part][term] + 4 * s
                P.e(f"{M16} {vr(acc,4)}, {vr(A,4)}, {vr(B,4)}, {vr(acc,4) if k4 else 0}")
        P.add(rest.pop(0))
    O = 96
    for row in range(2):
        c1, c2 = CO + 4 * row, CO + 4 * row + 2
        for r in range(4): P.e(f"v_mul_f32 v{O+8*row+r}, v{c1}, v{VA+r}\nv_mul_f32 v{O+8*row+4+r}, v{c1}, v{VA+4+r}")
        for r in range(4): P.e(f"v_fma_f32 v{O+8*row+r}, -v{c1+1}, v{VA+4+r}, v{O+8*row+r}\nv_fma_f32 v{O+8*row+4+r}, v{c1+1}, v{VA+r}, v{O+8*row+4+r}")
        P.add(rest.pop(0))
        for r in range(4): P.e(f"v_fma_f32 v{O+8*row+r}, v{c2}, v{VA+8+r}, v{O+8*row+r}\nv_fma_f32 v{O+8*row+4+r}, v{c2}, v{VA+12+r}, v{O+8*row+4+r}")
        for r in range(4): P.e(f"v_fma_f32 v{O+8*row+r}, -v{c2+1}, v{VA+12+r}, v{O+8*row+r}\nv_fma_f32 v{O+8*row+4+r}, v{c2+1}, v{VA+8+r}, v{O+8*row+4+r}")
        P.add(rest.pop(0))
        for z in range(4): P.e(f"v_cvt_pk_bf16_f32 v{24+4*row+z}, v{O+8*row+2*z}, v{O+8*row+2*z+1}")
        P.e(f"ds_write_b128 {'v11' if row else 'v6'}, {vr(24+4*row,4)}")
    P.e(f"""
    s_lshl_b32 {sE1}, {sW}, 4
    s_mul_i32 {sE1}, {sE1}, 28672
    s_lshl_b32 {sE3}, {sK}, 10
    s_add_u32 {sE1}, {sE1}, {sE3}
    s_lshl_b32 {sE3}, {sP}, 7
    s_add_u32 {sE1}, {sE1}, {sE3}
    s_add_u32 {sE1}, {sE1}, {TBUF}
    s_add_u32 {sE3}, {sE1}, {8*28672}
    s_waitcnt lgkmcnt(0)
    ds_read_b128 v[24:27], v7
    ds_read_b128 v[28:31], v7 offset:1024
    """)
    P.e(f"buffer_store_dwordx4 v[24:27], v8, {WS_}, {sE1} offen sc1", 'T')
    P.e(f"buffer_store_dwordx4 v[28:31], v8, {WS_}, {sE3} offen sc1", 'T')
    assert len(rest) == 2
    P.e(f"s_mul_i32 {sE1}, {sE}, 57344\ns_mul_i32 {sE2}, {sW}, 14336\ns_add_u32 {sE1}, {sE1}, {sE2}\ns_add_u32 {sE1}, {sE1}, {IFT}\ns_add_u32 {sE2}, {sE2}, {IFL}")
    P.add(rest)
    stamp(P, 9)
    GA = [32 + 16 * i for i in range(4)]
    D1, SA = 96, 112
    XR, XU, DPF = 128, 136, 152
    for u in range(4, HD): P.add(hload(u))
    pre = lines(f"""
    v_and_b32 v23, 31, v0
    v_mul_u32_u24 v2, 57344, v23
    v_lshrrev_b32 v24, 5, v0
    v_lshl_add_u32 v2, v24, 4, v2
    s_mul_i32 {sDB0}, {sN2}, 896
    s_lshl_b32 {sE1}, {sE}, 7
    s_add_u32 {sDB0}, {sDB0}, {sE1}
    s_and_b32 {sE1}, {sW}, 1
    s_lshl_b32 {sE2}, {sE1}, 6
    s_add_u32 {sDB0}, {sDB0}, {sE2}
    s_mul_i32 {sE1}, {sE1}, 28672
    s_add_u32 {sE1}, {sE1}, {IFL}
    v_add_u32 v3, {sE1}, {L16}
    v_bfe_u32 v25, v0, 2, 3
    v_lshlrev_b32 v4, 7, v25
    v_bfe_u32 v25, v0, 4, 1
    v_xor_b32 v25, v25, v24
    v_lshl_add_u32 v4, v25, 6, v4
    v_and_b32 v25, 3, v0
    v_lshl_add_u32 v4, v25, 4, v4
    s_lshr_b32 {sE1}, {sW}, 1
    s_mul_i32 {sE1}, {sE1}, 28672
    s_add_u32 {sE1}, {sE1}, {TLD}
    v_add_u32 v4, {sE1}, v4
    """)
    for lam in range(1, 4):
        pre += [f"s_xor_b32 {sE1}, {sW}, {lam}", f"s_mul_i32 {sE1}, {sE1}, 12288", f"s_add_u32 {sE1}, {sE1}, {IMG+(lam-1)*4096}", f"v_add_u32 v{4+lam}, {sE1}, {L16}"]
    pre += [f"s_mul_i32 {sE1}, {sW}, 12288", f"s_add_u32 {sE1}, {sE1}, {IMG}", f"v_add_u32 v8, {sE1}, {L16}"]
    pre += [f"s_mul_i32 {sW2A}, {sT}, 57344", f"s_mul_i32 {sW2B}, {sW}, 14336", f"s_add_u32 {sW2A}, {sW2A}, {sW2B}", f"s_add_u32 {sW2A}, {sW2A}, {TBUF}", f"s_add_u32 {sW2B}, {sW2B}, {TLD}"]
    pre += [f"s_mov_b32 {sDB1}, {f32bits(-math.log2(math.e)):#x}", f"s_add_u32 {sE4}, {sE4}, {HF1-HF0}"]
    pre += [f"s_lshl_b32 {sE1}, {sW}, 12", f"s_lshl_b32 {sE2}, {sBID}, 4", f"s_add_u32 {sE1}, {sE1}, {sE2}", f"s_add_u32 {sE1}, {sE1}, {TF}"]
    pre += [f"s_lshr_b32 {sE2}, {sT}, 3", f"s_lshl_b32 {sE2}, {sE2}, 12", f"s_and_b32 {sE3}, {sW}, 1", f"s_mul_i32 {sE3}, {sE3}, 1792", f"s_add_u32 {sE2}, {sE2}, {sE3}", f"s_add_u32 {sE2}, {sE2}, {TF}"]
    pre += ["v_min_u32 v9, 47, v0", "v_lshlrev_b32 v9, 4, v9"]
    spine = []
    for u in range(28):
        for lam in range(4):
            th, dt = lam >> 1, lam & 1
            spine.append(f"{M32} {vr(GA[lam],16)}, {ar(8*u+4*dt,4)}, {vr(HB+8*((u+4)%HD)+4*th,4)}, {vr(GA[lam],16) if u else 0}")
    n0 = len(spine)
    for z in range(28): spine.append(f"{M32} {vr(D1,16)}, {ar(112+4*z,4)}, {ar(4*z,4)}, {vr(D1,16) if z else 0}")
    last = len(spine) - 1
    ms = [(0, 12, x) for x in pre]
    tfl = [f"buffer_load_dword v10, {L16}, {WS_}, {sE2} offen sc1", f"buffer_load_dword v11, v9, {WS_}, {sE2} offen offset:1024 sc1"]
    hl = [(12, 13, h0l)]
    for u in range(HD, 28):
        if u == 12: hl.append((16, 17, flag_set(sE1, 'T')))
        if u == 14: hl.append((24, 25, poll_check('h1', [h0l], [14])))
        if u == 16:
            hl.append((32, 34, [f"buffer_load_dwordx4 {vr(XR,4)}, v2, {X_}, {sDB0} offen"]))
            hl.append((32, 34, [f"buffer_load_dwordx4 {vr(XR+4,4)}, v2, {X_}, {sDB0} offen offset:32"]))
            hl.append((32, 34, [f"s_mov_b32 {sE3}, {DP}", f"buffer_load_dwordx4 {vr(DPF,4)}, {L16}, {TAB_}, {sE3} offen"]))
            hl.append((32, 34, [f"buffer_load_dwordx4 {vr(DPF+4,4)}, {L16}, {TAB_}, {sE3} offen offset:1024"]))
        if u == 22: hl.append((56, 57, tfl))
        for k, grp in enumerate(hload(u)): hl.append((4 * (u - HD) + 1 + 2 * k, 4 * (u - HD) + 3 + 2 * k, grp))
    hl.sort(key=lambda x: x[0])
    TG = 80
    hl.append((TG, TG, poll_check('t', tfl, [10, 11])))
    for u in range(14):
        hl.append((TG + 2 * u, TG + 2 * u + 2, [I(f"s_add_u32 {sC}, {sW2A}, {u*1024}")] + dma(WS_, L16, sC, (sW2B, u * 1024), 0, 'Tl', 'sc1')))
    rd_ = [(13, 13, [WaitVM('iF'), I('s_barrier')])]
    for z in range(28): rd_.append((max(13, 4 * (z >> 1) + 3), 4 * (z >> 1) + 18, I(f"ds_read_b128 {ar(4*z,4)}, v3 offset:{1024*z}", 'ifr')))
    for u in range(NW2R, 28):
        for x in w2_tr(u): rd_.append((60, 72, x))
    rd_.append((74, TG - 1, [I('s_waitcnt lgkmcnt(0)'), I('s_barrier')]))
    rd_.append((n0 - 1, n0 - 1, [WaitVM('Tl'), I('s_barrier')]))
    for z in range(28): rd_.append((n0 - 1, max(n0 - 1, n0 + z - 4), f"ds_read_b128 {ar(112+4*z,4)}, v4 offset:{1024*z}"))
    xs = []
    for qq in range(2):
        for z in range(2): xs.append((70, 100, f"v_permlane32_swap_b32 v{XR+4*qq+z}, v{XR+4*qq+2+z}"))
    for z in range(8):
        xs.append((70, 100, f"v_lshlrev_b32 v{XU+2*z}, 16, v{XR+z}"))
        xs.append((70, 100, f"v_and_b32 v{XU+2*z+1}, {sMASK}, v{XR+z}"))
    red = []
    for lam in range(1, 4):
        for q in range(4): red.append((n0 + 1, n0 + 6, I(f"ds_write_b128 v{4+lam}, {vr(GA[lam]+4*q,4)} offset:{1024*q}", 'pw')))
    red.append((n0 + 1, n0 + 8, [WaitLG('pw'), I('s_barrier')]))
    for lam in range(1, 4):
        for q in range(4): red.append((n0 + 1, n0 + 12, f"ds_read_b128 {vr(GA[lam]+4*q,4)}, v8 offset:{(lam-1)*4096+1024*q}"))
    Gq = GA[0]
    for quad in range(4):
        r = [4 * quad + k for k in range(4)]
        for lam in range(1, 4):
            for k in r: red.append((n0 + 1, last, f"v_add_f32 v{Gq+k}, v{Gq+k}, v{GA[lam]+k}"))
        T = GA[1]
        for k in r: red.append((n0 + 1, last, f"v_mul_f32 v{T+k}, {sDB1}, v{Gq+k}"))
        for k in r: red.append((n0 + 1, last, f"v_exp_f32 v{T+k}, v{T+k}"))
        for k in r: red.append((n0 + 1, last, f"v_add_f32 v{T+k}, 1.0, v{T+k}"))
        for k in r: red.append((n0 + 1, last, f"v_rcp_f32 v{T+k}, v{T+k}"))
        for k in r: red.append((n0 + 1, last, f"v_mul_f32 v{Gq+k}, v{Gq+k}, v{T+k}"))
    stm = [(4, 4, stamp_i(10)), (56, 56, stamp_i(11)), (n0 - 2, n0 - 2, stamp_i(12))] if STAMPS else []
    P.add(weave(spine, [ms, hl, rd_, xs, red, stm], cap=5, report=rep))
    for z in range(8): P.e(f"v_cvt_pk_bf16_f32 v{24+z}, v{D1+2*z}, v{D1+2*z+1}")
    for ss in range(2): P.e(f"{M32} {vr(SA,16)}, {vr(24+4*ss,4)}, {vr(DPF+4*ss,4)}, {vr(SA,16) if ss else 0}")
    for r in range(16): P.e(f"v_fma_f32 v{Gq+r}, v{SA+r}, v{Gq+r}, v{XU+r}")
    for z in range(8): P.e(f"v_cvt_pk_bf16_f32 v{24+z}, v{Gq+2*z}, v{Gq+2*z+1}")
    for qq in range(2):
        for z in range(2): P.e(f"v_permlane32_swap_b32 v{24+4*qq+z}, v{24+4*qq+2+z}")
    P.e(f"buffer_store_dwordx4 v[24:27], v2, {OUT_}, {sDB0} offen")
    P.e(f"buffer_store_dwordx4 v[28:31], v2, {OUT_}, {sDB0} offen offset:32")
    stamp_out(P, 13)

def build():
    rep = []
    P = Prog(); main(P, rep)
    P.raw("L_end:"); P.e("s_endpgm")
    aux(P)
    body = P.finalize() + "".join(slow_paths)
    print(P.stats, file=sys.stderr)
    for r in rep: print(r, sum(max(32, 8 + 4 * x) for x in r[1:]), file=sys.stderr)
    lbl = NAME + "_kernel"
    s = f"; @launch grid=({NAUX+NMAIN},1,1) block=(256,1,1) lds=163840\n"
    s += '.amdgcn_target "amdgcn-amd-amdhsa--gfx950"\n.text\n' + G.kernel_text(lbl, body)
    s += '.section .rodata,"a"\n' + G.descriptor(lbl) + tables()
    return s
if __name__ == "__main__":
    STAMPS = 'stamps' in sys.argv
    for a in sys.argv:
        if a.startswith('exfil='):
            EXFIL = a[6:]; STAMPS = '-' in EXFIL
    txt = build()
    open(sys.argv[1], "w").write(txt)
```

```python
import sys, math
import numpy as np
from asmlib import *
import gen as G
from gen import (NAME, HBUF, YBUF, TBUF, FT, IFT, CT, DP, TAB_SIZE, SLOT, X_, W1_, W3_, W2_, WR_, WI_, OUT_, WS_, TAB_, DBG_,
                 sW, sI, sJ, sP, sK, sT, sE, sN2, sMASK, sONES, sW4K, sA, sB, sC, sD, sDB0, sDB1, sH0, sH1, sW2A, sW2B,
                 vr, ar, XF, ACC, ABUF, L16, f32bits, bfbits, dma, tables)
NAUX = 32; NMAIN = 224
FLG = 0xA80000
YF, HF0, HF1, TF = FLG, FLG + 0x4000, FLG + 0x8000, FLG + 0xC000
STAMP = 0xA90000; WS_SIZE = 0xB00000
sBID = 's59'
sE1, sE2, sE3, sE4 = 's70', 's71', 's4', 's5'
M32 = "v_mfma_f32_32x32x16_bf16"; M16 = "v_mfma_f32_16x16x32_bf16"
STAMPS = False
SPIN = 100000
def stamp_i(n): return [I(f"s_memtime s[{72+2*n}:{73+2*n}]")] if STAMPS else []
def stamp(P, n): P.add(stamp_i(n))
EXFIL = None
EARLY = False
def exfil_start(P):
    if EXFIL != 'min': return
    P.e(f"s_lshl_b32 {sA}, {sBID}, 2\ns_add_u32 {sA}, {sA}, {STAMP}\nv_mov_b32 v30, s6\nv_mov_b32 v31, 0\nbuffer_store_dword v30, v31, {WS_}, {sA} offen sc1")
def exfil_end(P, n):
    P.e(f"s_waitcnt vmcnt(0)\ns_memtime s[{72+2*n}:{73+2*n}]\ns_waitcnt lgkmcnt(0)")
    P.e(f"v_lshlrev_b32 v1, 2, v0\ns_mov_b32 {sA}, {STAMP}\nv_min_u32 v2, 31, v0\nv_lshlrev_b32 v2, 2, v2")
    for k in range(3): P.e(f"buffer_load_dword v{4+k}, v1, {WS_}, {sA} offen offset:{256*k} sc1")
    P.e(f"buffer_load_dword v7, v2, {WS_}, {sA} offen offset:768 sc1\ns_waitcnt vmcnt(0)")
    if EXFIL == 'own':
        for k in range(4): P.e(f"v_mov_b32 v{4+k}, s6")
        P.e(f"s_mov_b32 {sB}, 10000")
    elif EXFIL == 'min': P.e(f"s_mov_b32 {sB}, 10000")
    else:
        a, b = EXFIL.split('-')
        for k in range(4): P.e(f"v_mov_b32 v{4+k}, s6")
        P.e(f"s_sub_u32 {sB}, s{72+2*int(b)}, s{72+2*int(a)}\ns_lshr_b32 {sB}, {sB}, 2\ns_add_u32 {sB}, {sB}, 10000")
    P.e("s_mov_b32 s3, 0")
    P.raw("L_exf:", sync=True)
    P.e(f"""s_memrealtime s[4:5]
    s_waitcnt lgkmcnt(0)
    v_sub_u32 v8, s4, v4
    v_sub_u32 v9, s4, v5
    v_sub_u32 v10, s4, v6
    v_sub_u32 v11, s4, v7
    v_max3_u32 v8, v8, v9, v10
    v_max_u32 v8, v8, v11
    v_cmp_le_u32 vcc, {sB}, v8
    s_cbranch_vccnz L_end
    s_add_u32 s3, s3, 1
    s_cmp_lt_u32 s3, 100000
    s_cbranch_scc1 L_exf""")
def stamp_out(P, n):
    if EXFIL is not None: return exfil_end(P, n)
    if not STAMPS: return
    P.e("s_waitcnt vmcnt(0)")
    P.e(f"s_memtime s[{72+2*n}:{73+2*n}]\ns_memrealtime s[4:5]\ns_waitcnt lgkmcnt(0)")
    P.e(f"s_lshl_b32 {sA}, {sBID}, 2\ns_add_u32 {sA}, {sA}, {sW}\ns_lshl_b32 {sA}, {sA}, 6\ns_add_u32 {sA}, {sA}, {STAMP}")
    P.e("v_mov_b32 v2, 0")
    for k in range(n + 1):
        P.e(f"v_mov_b32 v3, s{72+2*k}\nbuffer_store_dword v3, v2, {WS_}, {sA} offen offset:{4*k}")
    P.e(f"v_mov_b32 v3, s6\nbuffer_store_dword v3, v2, {WS_}, {sA} offen offset:56")
    P.e(f"v_mov_b32 v3, s4\nbuffer_store_dword v3, v2, {WS_}, {sA} offen offset:60")

slow_paths = []
def poll_check(name, loads, regs):
    t = regs[0]
    red = [f"v_min_u32 v{t}, v{t}, v{r}" for r in regs[1:]]
    slow_paths.append(f"L_slow_{name}:\n    s_mov_b32 s3, 0\nL_retry_{name}:\n" + "".join(f"    {x}\n" for x in loads) + "    s_waitcnt vmcnt(0)\n" +
                      "".join(f"    {x}\n" for x in red) +
                      f"    v_cmp_eq_u32 vcc, 0, v{t}\n    s_add_u32 s3, s3, 1\n    s_cbranch_vccz L_ok_{name}\n    s_cmp_lt_u32 s3, {SPIN}\n"
                      f"    s_cbranch_scc1 L_retry_{name}\n    s_branch L_ok_{name}\n")
    return [I(x) for x in red] + [I(f"v_cmp_eq_u32 vcc, 0, v{t}"), I(f"s_cbranch_vccnz L_slow_{name}"), Raw(f"L_ok_{name}:")]
def flag_set(soff, tags, tmp=31):
    return [WaitVM(tags), I(f"v_mov_b32 v{tmp}, 1"), I(f"v_mov_b32 v{tmp-1}, 0"), I("s_mov_b64 exec, 1"),
            I(f"buffer_store_dword v{tmp}, v{tmp-1}, {WS_}, {soff} offen sc1"), I("s_mov_b64 exec, -1")]

def dbslot(d, c): return ([9, 0, 1, 2, 3, 4, 5] if d == 0 else [6, 9, 0, 1, 2, 3, 4])[c]
SCR = 143360
def db_dma(d, c):
    base = dbslot(d, c) * SLOT; koff = 64 * c * 3584 + 128 * d; tag = f"db{d}_{c}"
    return [[I(f"s_add_u32 {sA}, {sDB0}, {koff}")] + dma(W1_, 'v4', sA, (sW4K, base), 0, tag),
            [I(f"s_add_u32 {sB}, {sDB1}, {koff}")] + dma(W1_, 'v4', sB, None, 1024, tag),
            dma(W3_, 'v4', sA, (sW4K, base + 2048), 0, tag), dma(W3_, 'v4', sB, None, 1024, tag)]
def db_tr(d, s, m, fb, dst, tag=None):
    c, q = s >> 2, s & 3
    off = dbslot(d, c) * SLOT + q * 4096 + m * 2048
    win, off = off >> 16, off & 0xffff
    base = f"v{11 + 2 * win + fb}"
    return [I(f"ds_read_b64_tr_b16 {ar(dst, 2)}, {base} offset:{off}", tag), I(f"ds_read_b64_tr_b16 {ar(dst + 2, 2)}, {base} offset:{off + 512}", tag)]
NW2R = 20
STG = (5, 7, 8)
def w2_lds(u):
    if u < NW2R: return STG[(u >> 1) % 3] * SLOT + (u & 1) * 2048
    v = u - NW2R
    return (1 + (v >> 1)) * SLOT + (v & 1) * 2048
def w2_dma(u):
    s = 8 * (u % 14) + 4 * (u // 14); tag = f"w2_{u}"
    return [[I(f"s_add_u32 {sC}, {sW2A}, {s * 16 * 896}")] + dma(W2_, 'v5', sC, (sW4K, w2_lds(u)), 0, tag),
            [I(f"s_add_u32 {sD}, {sW2B}, {s * 16 * 896}")] + dma(W2_, 'v5', sD, None, 1024, tag)]
def w2_tr(u):
    off = w2_lds(u) - (5 * SLOT if u < NW2R else SLOT)
    o = []
    for dt in range(2):
        o += [I(f"ds_read_b64_tr_b16 {ar(8*u+4*dt, 2)}, v{17+dt} offset:{off}", f"w2r_{u}"),
              I(f"ds_read_b64_tr_b16 {ar(8*u+4*dt+2, 2)}, v{17+dt} offset:{off+1024}", f"w2r_{u}")]
    return o
def lines(t): return [x.strip() for x in t.strip().split('\n') if x.strip()]

def aux(P):
    P.raw("L_aux:", sync=True)
    P.e(f"""
    s_cmp_lg_u32 s2, 0
    s_cbranch_scc1 L_end
    v_mov_b32 v4, 0
    v_mov_b32 v5, 0
    v_mov_b32 v6, 0
    v_mov_b32 v7, 0
    s_lshl_b32 {sA}, {sW}, 14
    s_add_u32 {sA}, {sA}, {FLG}
    s_waitcnt lgkmcnt(0)
    """)
    for k in range(16):
        P.e(f"buffer_store_dwordx4 v[4:7], {L16}, {WS_}, {sA} offen offset:{(k & 3) * 1024} sc1")
        if k & 3 == 3: P.e(f"s_add_u32 {sA}, {sA}, 4096")
    P.e(f"""
    v_mov_b32 v8, 1
    s_lshl_b32 {sA}, {sW}, 2
    s_waitcnt vmcnt(0)
    s_mov_b64 exec, 1
    buffer_store_dword v8, v4, {DBG_}, {sA} offen sc1
    s_endpgm
    """)

def main(P, rep):
    if STAMPS or EXFIL: P.e("s_memrealtime s[6:7]")
    stamp(P, 0)
    P.e(f"s_cmp_ge_u32 s2, {NAUX+NMAIN}\ns_cbranch_scc1 L_end")
    for srd, off in ((8, 0), (12, 32), (16, 40), (36, 72), (44, 64), (20, 48), (24, 8), (28, 16), (32, 56)):
        P.e(f"s_load_dwordx2 s[{srd}:{srd+1}], s[0:1], {off}")
    P.e("s_getpc_b64 s[40:41]\ns_add_u32 s40, s40, TABS@rel32@lo+4\ns_addc_u32 s41, s41, TABS@rel32@hi+12")
    for srd, size in ((8, 1835008), (12, 1605632), (16, 1605632), (20, 1605632), (24, 921600), (28, 921600), (32, 1835008), (36, WS_SIZE), (40, TAB_SIZE), (44, 256)):
        P.e(f"s_mov_b32 s{srd+2}, {size}\ns_mov_b32 s{srd+3}, 0x20000")
    P.e(f"""
    v_lshrrev_b32 v2, 6, v0
    v_and_b32 v0, 63, v0
    v_readfirstlane_b32 {sW}, v2
    v_lshlrev_b32 {L16}, 4, v0
    s_cmp_lt_u32 s2, {NAUX}
    s_cbranch_scc1 L_aux
    s_sub_u32 {sBID}, s2, {NAUX}
    s_and_b32 {sP}, {sBID}, 7
    s_lshr_b32 {sK}, {sBID}, 3
    s_and_b32 {sA}, {sK}, 3
    s_lshr_b32 {sE}, {sK}, 2
    s_lshr_b32 {sI}, {sP}, 1
    s_lshl_b32 {sI}, {sI}, 2
    s_add_u32 {sI}, {sI}, {sA}
    s_and_b32 {sJ}, {sP}, 1
    s_mul_i32 {sJ}, {sJ}, 7
    s_add_u32 {sJ}, {sJ}, {sE}
    s_lshl_b32 {sT}, {sP}, 2
    s_add_u32 {sT}, {sT}, {sA}
    s_lshl_b32 {sN2}, {sI}, 2
    s_add_u32 {sN2}, {sN2}, {sW}
    s_lshl_b32 {sW4K}, {sW}, 12
    s_mov_b32 {sMASK}, 0xffff0000
    s_mov_b32 {sONES}, 0x3f803f80
    v_lshrrev_b32 v23, 3, v0
    v_and_b32 v24, 7, v0
    v_lshrrev_b32 v25, 1, v23
    v_xor_b32 v26, v24, v25
    v_mul_u32_u24 v2, 57344, v23
    v_lshl_add_u32 v2, v26, 4, v2
    v_xor_b32 v3, 64, v2
    s_mul_i32 {sE1}, {sN2}, 896
    """)
    def xdma(c):
        return [[I(f"s_add_u32 {sC}, {sE1}, {rb*(8*57344-1024) + c*128}")] + dma(X_, 'v3' if rb & 1 else 'v2', sC, (sW4K, c * SLOT) if rb == 0 else None, rb * 1024, f'x{c}') for rb in range(4)]
    setup = lines(f"""
    v_mul_u32_u24 v4, 3584, v23
    v_mul_u32_u24 v5, 896, v23
    v_and_b32 v25, 1, v25
    v_lshlrev_b32 v25, 2, v25
    v_xor_b32 v26, v24, v25
    v_lshl_add_u32 v4, v26, 4, v4
    v_lshl_add_u32 v5, v26, 4, v5
    s_mul_i32 {sDB0}, {sW}, {16*3584}
    s_lshl_b32 {sA}, {sJ}, 8
    s_add_u32 {sDB0}, {sDB0}, {sA}
    s_add_u32 {sDB1}, {sDB0}, {8*3584-1024}
    v_and_b32 v23, 31, v0
    v_lshlrev_b32 v24, 7, v23
    v_add_u32 v24, {sW4K}, v24
    v_bfe_u32 v25, v0, 1, 3
    v_lshrrev_b32 v26, 5, v0
    v_xor_b32 v25, v25, v26
    v_lshl_add_u32 v6, v25, 4, v24
    v_xor_b32 v7, 32, v6
    v_xor_b32 v8, 64, v6
    v_xor_b32 v9, 0x60, v6
    v_add_u32 v10, {7*SLOT}, {L16}
    v_bfe_u32 v24, v0, 2, 2
    v_lshlrev_b32 v23, 7, v24
    v_bfe_u32 v25, v0, 4, 1
    v_lshl_add_u32 v23, v25, 5, v23
    v_and_b32 v25, 3, v0
    v_lshl_add_u32 v23, v25, 3, v23
    v_bfe_u32 v24, v0, 3, 1
    v_lshl_add_u32 v11, v24, 6, v23
    v_lshl_add_u32 v11, v26, 10, v11
    v_xor_b32 v12, 64, v11
    v_add_u32 v13, 0x10000, v11
    v_add_u32 v14, 0x10000, v12
    v_add_u32 v15, 0x20000, v11
    v_add_u32 v16, 0x20000, v12
    s_and_b32 {sA}, {sW}, 1
    v_xor_b32 v24, {sA}, v24
    v_lshl_add_u32 v17, v24, 6, v23
    v_lshl_add_u32 v17, v26, 9, v17
    s_add_u32 {sA}, {sW4K}, {5*SLOT}
    v_add_u32 v17, {sA}, v17
    v_xor_b32 v18, 64, v17
    s_mul_i32 {sW2A}, {sW}, {16*896}
    s_lshl_b32 {sA}, {sE}, 7
    s_add_u32 {sW2A}, {sW2A}, {sA}
    s_add_u32 {sW2B}, {sW2A}, {8*896-1024}
    s_mul_i32 {sH0}, {sN2}, {112*1024}
    s_lshl_b32 {sA}, {sJ}, 13
    s_add_u32 {sH0}, {sH0}, {sA}
    s_add_u32 {sH0}, {sH0}, {HBUF}
    s_add_u32 {sH1}, {sH0}, 4096
    v_mov_b32 v28, 0
    v_mov_b32 v29, 0
    v_mov_b32 v30, 0
    v_mov_b32 v31, 0
    """)
    setup += lines(f"""
    v_bfe_u32 v23, v0, 2, 1
    v_cmp_eq_u32 vcc, v23, v26
    v_bfe_u32 v23, v0, 3, 1
    v_and_b32 v24, 3, v0
    v_lshl_add_u32 v23, v23, 2, v24
    v_cndmask_b32 v23, 8, v23, vcc
    v_and_b32 v24, 1, v0
    v_lshlrev_b32 v24, 4, v24
    v_lshlrev_b32 v24, v24, 0x3f80
    v_lshrrev_b32 v23, 1, v23
    v_bfe_u32 v25, v0, 4, 1
    v_lshl_add_u32 v23, v25, 3, v23
    """)
    for z in range(8):
        setup += [f"v_cmp_eq_u32 vcc, {z if z < 4 else z + 4}, v23", f"v_cndmask_b32 v25, 0, v24, vcc", f"v_accvgpr_write_b32 a{16+z}, v25"]
    setup = [x.replace("v_lshlrev_b32 v24, v24, 0x3f80", "v_mov_b32 v25, 0x3f80\nv_lshlrev_b32 v24, v24, v25") for x in setup]
    setup = sum([x.split('\n') for x in setup], [])
    P.e("s_waitcnt lgkmcnt(0)")
    if EARLY: stamp(P, 10)
    exfil_start(P)
    first = xdma(0) + xdma(1) + xdma(2) + xdma(3)
    k = 0
    for gi, grp in enumerate(first):
        P.add(grp)
        n = (len(setup) * (gi + 1)) // len(first)
        P.add(setup[k:n]); k = n
    stamp(P, 1)
    later = xdma(4) + xdma(5) + xdma(6) + db_dma(0, 0) + db_dma(0, 1) + db_dma(0, 2) + db_dma(0, 3)
    def rd(c): return [I(f"ds_read_b128 {vr(XF+16*c+4*q, 4)}, v{6+q} offset:{(c & 3) * SLOT}", f"xr{c}") for q in range(4)]
    P.waitvm('x0')
    if EARLY: stamp(P, 11)
    P.add(rd(0))
    for c in range(7):
        dots = []
        for r in range(16):
            x = XF + 16 * c + r
            dots += [f"v_dot2c_f32_bf16 v{28+(r&1)}, {sONES}, v{x}", f"v_dot2c_f32_bf16 v{30+(r&1)}, v{x}, v{x}"]
        for g in range(4):
            P.add(later[4 * c + g])
            if g == 2 and c < 6:
                if c == 3: P.add([f"v_add_u32 v{6+q}, 0x10000, v{6+q}" for q in range(4)])
                P.waitvm(f'x{c+1}')
                if EARLY and c == 2: stamp(P, 12)
                P.add(rd(c + 1))
            P.add(dots[8 * g:8 * g + 8])
    stamp(P, 2)
    CM = 240; IDT = ACC[4]
    P.e(f"""
    s_nop 2
    v_add_f32 v28, v28, v29
    v_add_f32 v30, v30, v31
    v_mov_b32 v29, v28
    v_mov_b32 v31, v30
    v_permlane32_swap_b32 v28, v29
    v_permlane32_swap_b32 v30, v31
    v_add_f32 v28, v28, v29
    v_add_f32 v30, v30, v31
    v_mul_f32 v19, {f32bits(-1/448):#x}, v28
    v_mul_f32 v30, {f32bits(1/448):#x}, v30
    """)
    for r in range(16): P.e(f"v_mov_b32 v{CM+r}, v19")
    def ident(pp):
        return [f"{M32} {vr(IDT,16)}, {ar(16,4)}, {vr(XF+8*pp,4)}, {vr(CM,16)}", f"{M32} {vr(IDT,16)}, {ar(20,4)}, {vr(XF+8*pp+4,4)}, {vr(IDT,16)}"]
    def identcvt(pp): return [f"v_cvt_pk_bf16_f32 v{XF+8*pp+z}, v{IDT+2*z}, v{IDT+2*z+1}" for z in range(8)]
    P.add(ident(0))
    P.waitvm(['db0_0', 'db0_1']); P.e("s_barrier")
    tiles = ((0, 0, ACC[0]), (1, 0, ACC[2]), (0, 1, ACC[1]), (1, 1, ACC[3]))
    for t, (m, fb, acc) in enumerate(tiles): P.add(db_tr(0, 0, m, fb, ABUF + 4 * t))
    P.e(f"""
    v_fma_f32 v30, -v19, v19, v30
    v_max_f32 v30, 0, v30
    v_add_f32 v21, {f32bits(1e-5):#x}, v30
    v_rsq_f32 v29, v21
    v_and_b32 v23, 31, v0
    s_lshl_b32 {sA}, {sW}, 7
    s_add_u32 {sA}, {sA}, {SCR}
    v_lshl_add_u32 v23, v23, 2, {sA}
    ds_write_b32 v23, v29
    v_mul_f32 v20, {f32bits(-math.log2(math.e)):#x}, v29
    v_lshrrev_b32 v23, 5, v0
    v_lshl_add_u32 v19, v23, 4, {sA}
    """)
    P.add(identcvt(0))
    stamp(P, 3)
    spine = []; ix = {}
    for s in range(28):
        for t, (m, fb, acc) in enumerate(tiles):
            ix[s, t] = len(spine)
            spine.append(f"{M32} {vr(acc,16)}, {ar(ABUF+16*(s&1)+4*t,4)}, {vr(XF+4*s,4)}, {vr(acc,16) if s else 0}")
            if s % 2 == 0 and t == 1 and s < 26:
                ix['id', s // 2 + 1] = len(spine); spine += ident(s // 2 + 1)
    n0 = len(spine)
    DA = ACC[5]
    for s in range(28):
        ix['d', s] = len(spine)
        spine.append(f"{M32} {vr(DA,16)}, {vr(XF+4*s,4)}, {ar(ABUF+16*((s>>2)&1)+4*(s&3),4)}, {vr(DA,16) if s else 0}")
    n1 = len(spine)
    Pp, Q = ACC[4], ACC[5]
    def setof(k): return ABUF + 16 * (((k >> 1) + 1) & 1) + 8 * (k & 1)
    for k in range(56):
        half, s = divmod(k, 28)
        accs = (ACC[0], ACC[2]) if half == 0 else (ACC[4], ACC[5])
        for m in range(2):
            ix['p', k, m] = len(spine)
            spine.append(f"{M32} {vr(accs[m],16)}, {ar(setof(k)+4*m,4)}, {vr(XF+4*s,4)}, {vr(accs[m],16) if s else 0}")
        if k == 3:
            ix['B'] = len(spine)
            for ss in range(2):
                spine.append(f"{M32} {vr(Pp,16)}, {vr(240+4*ss,4)}, {ar(4*ss,4)}, {vr(Pp,16) if ss else 0}")
                spine.append(f"{M32} {vr(Q,16)}, {vr(240+4*ss,4)}, {ar(8+4*ss,4)}, {vr(Q,16) if ss else 0}")
    n2 = len(spine); last = n2 - 1
    trs = []; bar = {}
    def macro(start, nxt, reads, tag, pre=None):
        if pre: trs.append((start, start, pre))
        for x in reads: trs.append((start, max(start, nxt - 3), x))
        trs.append((nxt - 1, nxt - 1, WaitLG(tag)))
    for s in range(1, 28):
        reads = sum([db_tr(0, s, m, fb, ABUF + 16 * (s & 1) + 4 * t, f"r{s}") for t, (m, fb, acc) in enumerate(tiles)], [])
        pre = None; st = ix[s - 1, 0] - 1
        if s in (8, 16, 24):
            c = s // 4
            pre = [WaitVM([f'db0_{c}', f'db0_{min(c+1,6)}'] + (['F'] if s == 24 else [])), I('s_barrier')]; bar[s] = st
        macro(st, ix[s, 0], reads, f"r{s}", pre)
    for mc in range(7):
        reads = [I(f"ds_read_b128 {ar(ABUF+16*(mc&1)+4*q,4)}, v10 offset:{(4*mc+q)*1024}", f"f{mc}") for q in range(4)]
        st = (ix[27, 0] if mc == 0 else ix['d', 4 * mc - 4]) - 1
        pre = None
        if mc == 1: pre = [I('s_barrier')]; bar['D'] = st
        macro(st, ix['d', 4 * mc], reads, f"f{mc}", pre)
    for mc in range(28):
        reads = []
        for k in (2 * mc, 2 * mc + 1):
            half, s = divmod(k, 28)
            for m in range(2): reads += db_tr(1, s, m, half, setof(k) + 4 * m, f"p{mc}")
        st = (ix['d', 24] if mc == 0 else ix['p', 2 * mc - 2, 0]) - 1
        pre = None
        if mc == 0: pre = [WaitVM([f'db1_{c}' for c in range(5)]), I('s_barrier')]; bar['D2'] = st
        if mc == 6: pre = [WaitVM(['db1_5', 'db1_6']), I('s_barrier')]; bar['E'] = st
        if mc == 21: pre = [I('s_barrier')]; bar['F'] = st
        macro(st, ix['p', 2 * mc, 0], reads, f"p{mc}", pre)
    idc = []
    for pp in range(1, 14):
        for x in identcvt(pp): idc.append((ix['id', pp] + 3, ix[2 * pp, 0] - 2, x))
    dm = []
    def put(groups, lo, step=2, slack=3):
        for k, grp in enumerate(groups): dm.append((lo + step * k, lo + step * k + slack, grp))
        return lo + step * len(groups)
    fset = [I(f"s_mul_i32 {sE1}, {sJ}, 28672"), I(f"s_add_u32 {sE1}, {sE1}, {FT}"), I(f"s_lshl_b32 {sE2}, {sW}, 10"), I(f"s_add_u32 {sE1}, {sE1}, {sE2}")]
    fd = [[I(f"s_add_u32 {sC}, {sE1}, {u*4096}")] + dma(TAB_, L16, sC, (sE2, 7 * SLOT + u * 4096), 0, 'F') for u in range(7)]
    g = put(db_dma(0, 4) + db_dma(0, 5) + db_dma(0, 6) + db_dma(1, 0), 0)
    g = put([fset + fd[0]] + fd[1:3], g)
    g = put(db_dma(1, 1) + db_dma(1, 2) + fd[3:], max(g, bar[8] + 1))
    g = put(db_dma(1, 3) + db_dma(1, 4), max(g, bar[16] + 1))
    dbgld = f"buffer_load_dword v27, v26, {DBG_}, 0 offen sc1"
    dm.append((g, g + 3, ["v_and_b32 v26, 3, v0", "v_lshlrev_b32 v26, 2, v26", I(dbgld)]))
    g = put(db_dma(1, 5) + db_dma(1, 6), max(g, bar[24] + 1))
    w2s = []
    g = max(g, bar['D'] + 1)
    when = {}
    for u in range(NW2R):
        if u == 2: g = max(g, bar['E'] + 1)
        if u >= 6: w2s.append((g, g + 2, [WaitLG(f'w2r_{u-6}')]))
        for grp in w2_dma(u):
            w2s.append((g, g + 2, grp)); g += 2
        when[u] = g
        if u >= 4:
            for x in [WaitVM(f'w2_{u-4}')] + w2_tr(u - 4): w2s.append((g, g + 2, x))
    for u in range(NW2R - 4, NW2R):
        g += 3
        for x in [WaitVM(f'w2_{u}')] + w2_tr(u): w2s.append((min(g, last), min(g + 2, last), x))
    print("w2 stream ends at gap", g, "of", last, file=sys.stderr)
    dm += w2s
    tb = lines(f"""
    v_bfe_u32 v23, v0, 2, 3
    v_lshlrev_b32 v22, 13, v23
    v_lshrrev_b32 v24, 5, v0
    v_lshl_add_u32 v22, v24, 6, v22
    v_and_b32 v25, 3, v0
    v_lshl_add_u32 v22, v25, 4, v22
    v_and_b32 v25, 1, v0
    v_lshl_add_u32 v23, v23, 1, v25
    v_sub_u32 v25, 32, v23
    v_cmp_eq_u32 vcc, 0, v23
    v_and_b32 v2, 2, v0
    v_lshlrev_b32 v24, 8, v24
    v_cndmask_b32 v25, v25, 16, vcc
    v_cmp_eq_u32 vcc, 0, v2
    v_add_u32 v24, {sN2}, v24
    v_cvt_f32_u32 v24, v24
    v_cndmask_b32 v23, v25, v23, vcc
    v_cvt_f32_u32 v23, v23
    v_mul_f32 v24, v23, v24
    v_mul_f32 v24, {f32bits(1/2048):#x}, v24
    v_mul_f32 v23, {f32bits(1/32):#x}, v23
    """)
    for ss in range(2):
        for z in range(4):
            for y in range(2):
                e = 2 * z + y; n1off = 16 * ss + 8 * (e >> 2) + (e & 3)
                tb += [f"v_mov_b32 v{2+y}, {f32bits(float(n1off)):#x}"]
            tb += ["v_fma_f32 v2, v23, v2, v24", "v_fma_f32 v3, v23, v3, v24", "v_fract_f32 v2, v2", "v_fract_f32 v3, v3",
                   "v_cos_f32 v6, v2", "v_cos_f32 v7, v3", "v_sin_f32 v8, v2", "v_sin_f32 v9, v3",
                   "v_cvt_pk_bf16_f32 v6, v6, v7", "v_cvt_pk_bf16_f32 v8, v8, v9",
                   f"v_accvgpr_write_b32 a{4*ss+z}, v6", f"v_accvgpr_write_b32 a{8+4*ss+z}, v8"]
    stb = [(0, n0 - 10, x) for x in tb]
    b0 = ix['B']
    for q in range(4): stb.append((n0 + 4, n1 - 4, f"ds_read_b128 {vr(ACC[4]+4*q,4)}, v19 offset:{32*q}"))
    for r in range(16): stb.append((n1 + 1, b0 - 2, f"v_mul_f32 v{DA+r}, v{ACC[4]+r}, v{DA+r}"))
    for z in range(8): stb.append((n1 + 1, b0 - 1, f"v_cvt_pk_bf16_f32 v{240+z}, v{DA+2*z}, v{DA+2*z+1}"))
    lo, hi = b0 + 6, b0 + 22
    for r in range(8):
        stb.append((lo, hi, f"v_add_f32 v{Pp+r}, v{Pp+r}, v{Q+8+r}"))
        stb.append((lo, hi, f"v_sub_f32 v{Pp+8+r}, v{Pp+8+r}, v{Q+r}"))
    for sub in range(2):
        o = 240 + 4 * sub
        for z in range(2):
            stb.append((lo, hi, f"v_cvt_pk_bf16_f32 v{o+z}, v{Pp+4*sub+2*z}, v{Pp+4*sub+2*z+1}"))
            stb.append((lo, hi, f"v_cvt_pk_bf16_f32 v{o+2+z}, v{Pp+8+4*sub+2*z}, v{Pp+8+4*sub+2*z+1}"))
    stb.append((lo, hi, [f"s_lshl_b32 {sE1}, {sJ}, 17", f"s_lshl_b32 {sE2}, {sN2}, 7"]))
    stb.append((lo, hi, [f"s_add_u32 {sE1}, {sE1}, {sE2}", f"s_add_u32 {sE1}, {sE1}, {YBUF}", f"s_add_u32 {sE2}, {sE1}, 65536"]))
    for sub in range(2):
        o = 240 + 4 * sub
        stb.append((lo, hi, f"v_permlane32_swap_b32 v{o}, v{o+2}"))
        stb.append((lo, hi, f"v_permlane32_swap_b32 v{o+1}, v{o+3}"))
    for sub in range(2):
        stb.append((lo, hi, I(f"buffer_store_dwordx4 {vr(240+4*sub,4)}, v22, {WS_}, {sE2 if sub else sE1} offen sc1", 'Y')))
    stb.append((hi, hi + 4, poll_check('dbg', [dbgld], [27])))
    stb.append((hi + 18, hi + 20, [f"s_lshl_b32 {sE1}, {sJ}, 10", f"s_lshl_b32 {sE2}, {sN2}, 4", f"s_add_u32 {sE1}, {sE1}, {sE2}", f"s_add_u32 {sE1}, {sE1}, {YF}"]))
    stb.append((hi + 20, hi + 22, flag_set(sE1, 'Y')))
    epi = []
    for x in G.epilogue(ACC[0], ACC[2], 0): epi.append((n0 + 1, n1 - 2, x))
    for x in G.epilogue(ACC[1], ACC[3], 1): epi.append((n1, ix['p', 32, 0], x))
    for x in G.epilogue(ACC[0], ACC[2], 2): epi.append((ix['p', 28, 0] + 2, last, x))
    YL, ZL, TL = 0, 8192, 0
    CC, SS, NS = ACC[1], ACC[3], 64
    WRr, WIr = 32, 40
    cp = []
    g = ix['p', 36, 0]
    hf = [f"s_lshl_b32 {sE1}, {sN2}, 8", f"s_lshl_b32 {sE2}, {sJ}, 4", f"s_add_u32 {sE3}, {sE1}, {sE2}", f"s_add_u32 {sE1}, {sE3}, {HF0}", f"s_add_u32 {sE3}, {sE3}, {HF1}"]
    yfl = f"buffer_load_dword v27, {L16}, {WS_}, {sE4} offen sc1"
    wset = lines(f"""
    s_lshr_b32 {sE4}, {sK}, 1
    s_lshl_b32 {sE4}, {sE4}, 10
    s_add_u32 {sE4}, {sE4}, {YF}
    v_bfe_u32 v23, v0, 3, 1
    s_lshl_b32 {sE1}, {sP}, 1
    v_add_u32 v23, {sE1}, v23
    v_sub_u32 v24, 32, v23
    v_cmp_eq_u32 vcc, 0, v23
    s_and_b32 {sE1}, {sW}, 1
    s_cmp_eq_u32 {sE1}, 0
    v_cndmask_b32 v24, v24, 16, vcc
    s_cselect_b64 vcc, -1, 0
    v_cndmask_b32 v23, v24, v23, vcc
    v_lshrrev_b32 v24, 4, v0
    v_lshl_add_u32 v23, v24, 7, v23
    v_mul_u32_u24 v3, 450, v23
    v_and_b32 v24, 7, v0
    v_lshl_add_u32 v3, v24, 1, v3
    v_lshrrev_b32 v23, 3, v0
    v_bfe_u32 v25, v0, 4, 2
    v_lshlrev_b32 v25, 1, v25
    v_xor_b32 v24, v24, v25
    v_lshlrev_b32 v2, 7, v23
    v_lshl_add_u32 v2, v24, 4, v2
    """)
    cp.append((g - 8, g, wset[:13]))
    for x in wset[13:]: cp.append((g - 8, g, x))
    for r in range(16): cp.append((g - 2, g + 2, f"v_mov_b32 v{WRr+r}, 0"))
    for tt in range(2):
        cp.append((g, g + 2, [f"s_xor_b32 {sE2}, {sW}, {tt}", f"s_mul_i32 {sE2}, {sE2}, {16*32*450}", f"s_lshl_b32 {sE1}, {sK}, 4", f"s_add_u32 {sE2}, {sE2}, {sE1}"]))
        for r in range(4):
            cp.append((g, g + 2, [f"s_add_u32 {sE1}, {sE2}, {r*14400+2}", f"buffer_load_short_d16_hi v{WRr+4*tt+r}, v3, {WR_}, {sE1} offen"]))
            cp.append((g, g + 2, f"buffer_load_short_d16_hi v{WIr+4*tt+r}, v3, {WI_}, {sE1} offen")); g += 1
    for tt in range(2):
        cp.append((g, g + 2, [f"s_xor_b32 {sE1}, {sW}, {tt}", f"s_lshl_b32 {sE1}, {sE1}, 12", f"s_add_u32 {sE1}, {sE1}, {CT}"]))
        for s in range(2):
            cp.append((g, g + 2, f"buffer_load_dwordx4 {vr(CC+8*tt+4*s,4)}, {L16}, {TAB_}, {sE1} offen offset:{2048*s}")); g += 1
            cp.append((g, g + 2, f"buffer_load_dwordx4 {vr(SS+8*tt+4*s,4)}, {L16}, {TAB_}, {sE1} offen offset:{2048*s+1024}")); g += 1
    cp.append((g, g + 2, hf)); cp.append((g, g + 2, flag_set(sE1, ['h0', 'h1'])))
    cp.append((g, g + 2, yfl))
    print("C prefetch ends at gap", g, "of", last, file=sys.stderr)
    stm = [(n0 - 1, n0 - 1, stamp_i(4)), (n1 - 1, n1 - 1, stamp_i(5)), (ix['p', 28, 0], ix['p', 28, 0], stamp_i(6))] if STAMPS else []
    P.add(weave(spine, [trs, idc, dm, stb, epi, cp, stm], cap=5, report=rep))
    stamp(P, 7)
    P.add(poll_check('y', [yfl], [27]))
    P.e(f"""
    s_lshl_b32 {sA}, {sK}, 3
    s_add_u32 {sA}, {sA}, {sP}
    s_lshl_b32 {sA}, {sA}, 13
    s_lshl_b32 {sB}, {sW}, 11
    s_add_u32 {sA}, {sA}, {sB}
    s_add_u32 {sA}, {sA}, {YBUF}
    """)
    P.add(dma(WS_, 'v2', sA, (sB, YL), 0, 'Yl', 'sc1')); P.add(dma(WS_, 'v2', sA, None, 1024, 'Yl', 'sc1'))
    P.e("s_barrier")
    IMG, TLD, IFL = SLOT, 106496, 106496
    P.e(f"s_mul_i32 {sE1}, {sE}, 57344\ns_mul_i32 {sE2}, {sW}, 14336\ns_add_u32 {sE1}, {sE1}, {sE2}\ns_add_u32 {sE1}, {sE1}, {IFT}\ns_add_u32 {sE2}, {sE2}, {IFL}")
    bulk = sum([w2_dma(u) for u in range(NW2R, 28)], []) + [[I(f"s_add_u32 {sC}, {sE1}, {u*1024}")] + dma(TAB_, L16, sC, (sE2, u * 1024), 0, 'iF') for u in range(14)]
    YFr, XA, ZF, VA, CO = 96, 112, 64 + 16, 128, 48
    sc = 2.0 / (2048 * 448)
    work = [ins(x) for x in G.epilogue(ACC[4], ACC[5], 3)]
    work += [ins(x) for x in lines(f"""
    v_lshrrev_b32 v23, 5, v0
    s_lshl_b32 {sA}, {sP}, 1
    v_add_u32 v23, {sA}, v23
    v_sub_u32 v24, 32, v23
    v_cmp_eq_u32 vcc, 0, v23
    v_and_b32 v25, 15, v0
    s_lshl_b32 {sA}, {sW}, 4
    v_cndmask_b32 v24, v24, 16, vcc
    v_add_u32 v25, {sA}, v25
    v_mul_u32_u24 v23, v23, v25
    v_mul_u32_u24 v24, v24, v25
    v_cvt_f32_u32 v23, v23
    v_cvt_f32_u32 v24, v24
    v_mul_f32 v23, {f32bits(1/2048):#x}, v23
    v_mul_f32 v24, {f32bits(1/2048):#x}, v24
    v_cos_f32 v{CO}, v23
    v_sin_f32 v{CO+1}, v23
    v_cos_f32 v26, v24
    v_sin_f32 v27, v24
    v_mul_f32 v{CO}, {f32bits(sc):#x}, v{CO}
    v_mul_f32 v{CO+1}, {f32bits(sc):#x}, v{CO+1}
    v_mul_f32 v26, {f32bits(sc):#x}, v26
    v_mul_f32 v27, {f32bits(sc):#x}, v27
    v_sub_f32 v28, 0, v{CO}
    v_sub_f32 v29, 0, v27
    v_cndmask_b32 v{CO+2}, v26, 0, vcc
    v_cndmask_b32 v{CO+3}, v27, 0, vcc
    v_cndmask_b32 v{CO+4}, v{CO+1}, 0, vcc
    v_cndmask_b32 v{CO+5}, v28, 0, vcc
    v_cndmask_b32 v{CO+6}, v29, v26, vcc
    v_cndmask_b32 v{CO+7}, v26, v27, vcc
    v_lshrrev_b32 v23, 2, v0
    v_lshlrev_b32 v4, 7, v23
    v_bfe_u32 v24, v0, 3, 2
    s_and_b32 {sA}, {sW}, 1
    v_xor_b32 v24, {sA}, v24
    v_lshl_add_u32 v4, v24, 5, v4
    v_and_b32 v24, 3, v0
    v_lshl_add_u32 v4, v24, 3, v4
    v_xor_b32 v9, 64, v4
    s_lshl_b32 {sB}, {sA}, 12
    s_lshr_b32 {sE4}, {sW}, 1
    s_lshl_b32 {sE4}, {sE4}, 11
    s_add_u32 {sB}, {sB}, {sE4}
    s_lshl_b32 {sA}, {sA}, 3
    s_add_u32 {sB}, {sB}, {sA}
    s_add_u32 {sB}, {sB}, {ZL}
    v_add_u32 v12, {sB}, {L16}
    v_xor_b32 v10, 8, v12
    v_and_b32 v23, 15, v0
    v_bfe_u32 v24, v0, 4, 1
    s_lshr_b32 {sA}, {sP}, 2
    v_xor_b32 v24, {sA}, v24
    v_lshlrev_b32 v24, 2, v24
    v_lshrrev_b32 v25, 5, v0
    v_lshl_add_u32 v24, v25, 1, v24
    v_and_b32 v25, 7, v0
    v_xor_b32 v24, v24, v25
    v_lshlrev_b32 v6, 7, v23
    v_lshl_add_u32 v6, v24, 4, v6
    s_lshl_b32 {sA}, {sW}, 11
    s_add_u32 {sA}, {sA}, {TL}
    v_add_u32 v6, {sA}, v6
    v_xor_b32 v11, 16, v6
    v_lshrrev_b32 v23, 3, v0
    v_xor_b32 v24, v23, v25
    v_lshlrev_b32 v7, 7, v23
    v_lshl_add_u32 v7, v24, 4, v7
    v_add_u32 v7, {sA}, v7
    v_mul_u32_u24 v8, 28672, v23
    v_lshl_add_u32 v8, v25, 4, v8
    v_subrev_u32 v17, {4*SLOT}, v17
    v_subrev_u32 v18, {4*SLOT}, v18
    """)]
    work += [ins(f"v_xor_b32 v{NS+r}, 0x80008000, v{SS+r}") for r in range(16)]
    work += [ins(x) for x in lines(f"""
    v_and_b32 v13, 15, v0
    v_min_u32 v13, 13, v13
    v_bfe_u32 v14, v0, 4, 1
    v_lshlrev_b32 v14, 8, v14
    v_lshl_add_u32 v13, v13, 4, v14
    s_lshl_b32 {sE4}, {sT}, 9
    s_add_u32 {sE4}, {sE4}, {HF0}
    """)]
    h0l = f"buffer_load_dword v14, v13, {WS_}, {sE4} offen sc1"
    work.append(I(h0l))
    nb = 18; k = 0
    for gi in range(nb):
        P.add(bulk[gi]); n = (len(work) * (gi + 1)) // nb; P.add(work[k:n]); k = n
    stamp(P, 8)
    P.waitvm('Yl'); P.e("s_barrier")
    for part in range(2):
        for s in range(2):
            for t in range(2):
                P.e(f"ds_read_b64_tr_b16 {vr(YFr+8*part+4*s+2*t,2)}, {'v9' if part else 'v4'} offset:{YL+(32*s+16*t)*128}")
    P.add(bulk[nb]); P.add(bulk[nb + 1])
    for k4 in range(4):
        s, term = k4 >> 1, k4 & 1
        for part in range(2):
            for tt in range(2):
                acc = XA + 8 * part + 4 * tt
                if term == 0: A, B = CC + 8 * tt + 4 * s, YFr + 8 * part + 4 * s
                else: A, B = (NS if part else SS) + 8 * tt + 4 * s, YFr + 8 * (1 - part) + 4 * s
                P.e(f"{M16} {vr(acc,4)}, {vr(A,4)}, {vr(B,4)}, {vr(acc,4) if k4 else 0}")
        P.add(bulk[nb + 2 + k4])
    for r in range(8): P.e(f"v_mul_f32 v{ZF+r}, v{XA+r}, v{WRr+r}\nv_mul_f32 v{ZF+8+r}, v{XA+r}, v{WIr+r}")
    P.add(bulk[nb + 6])
    for r in range(8): P.e(f"v_fma_f32 v{ZF+r}, -v{XA+8+r}, v{WIr+r}, v{ZF+r}\nv_fma_f32 v{ZF+8+r}, v{XA+8+r}, v{WRr+r}, v{ZF+8+r}")
    P.add(bulk[nb + 7])
    for z in range(8): P.e(f"v_cvt_pk_bf16_f32 v{24+z}, v{ZF+2*z}, v{ZF+2*z+1}")
    for part in range(2):
        P.e(f"ds_write_b64 v12, {vr(24+4*part,2)} offset:{1024*part}\nds_write_b64 v10, {vr(26+4*part,2)} offset:{1024*part}")
    P.add(flag_set(sE3, ['h2', 'h3'], tmp=16))
    P.add(poll_check('h0', [h0l], [14]))
    HB, HD = 176, 8
    P.e(f"""
    s_lshr_b32 {sA}, {sW}, 1
    s_lshl_b32 {sB}, {sT}, 1
    s_add_u32 {sN2}, {sA}, {sB}
    s_mul_i32 {sH0}, {sN2}, {112*1024}
    s_xor_b32 {sA}, {sN2}, 1
    s_mul_i32 {sH1}, {sA}, {112*1024}
    s_lshl_b32 {sA}, {sW}, 10
    s_add_u32 {sA}, {sA}, {HBUF}
    s_add_u32 {sH0}, {sH0}, {sA}
    s_add_u32 {sH1}, {sH1}, {sA}
    """)
    def hload(u):
        s = 8 * (u % 14) + 4 * (u // 14); b = HB + 8 * ((u + 4) % HD)
        return [[I(f"s_add_u32 {sA}, {sH0}, {s*1024}"), I(f"buffer_load_dwordx4 {vr(b,4)}, {L16}, {WS_}, {sA} offen sc1")],
                [I(f"s_add_u32 {sB}, {sH1}, {s*1024}"), I(f"buffer_load_dwordx4 {vr(b+4,4)}, {L16}, {WS_}, {sB} offen sc1")]]
    hq = sum([hload(u) for u in range(4)], [])
    P.add(hq[0]); P.add(hq[1])
    P.e("s_waitcnt lgkmcnt(0)\ns_barrier")
    ZF2 = 96
    for f in range(8): P.e(f"ds_read_b128 {vr(ZF2+4*f,4)}, {L16} offset:{ZL+1024*f}")
    rest = hq[2:] + bulk[nb + 8:]
    for k4 in range(4):
        s, term = k4 >> 1, k4 & 1
        for c in range(2):
            for part in range(2):
                acc = VA + 8 * c + 4 * part
                A = ZF2 + 16 * c + 8 * s + 4 * term
                B = ((CC, NS), (SS, CC))[part][term] + 4 * s
                P.e(f"{M16} {vr(acc,4)}, {vr(A,4)}, {vr(B,4)}, {vr(acc,4) if k4 else 0}")
        P.add(rest.pop(0))
    O = 96
    for row in range(2):
        c1, c2 = CO + 4 * row, CO + 4 * row + 2
        for r in range(4): P.e(f"v_mul_f32 v{O+8*row+r}, v{c1}, v{VA+r}\nv_mul_f32 v{O+8*row+4+r}, v{c1}, v{VA+4+r}")
        for r in range(4): P.e(f"v_fma_f32 v{O+8*row+r}, -v{c1+1}, v{VA+4+r}, v{O+8*row+r}\nv_fma_f32 v{O+8*row+4+r}, v{c1+1}, v{VA+r}, v{O+8*row+4+r}")
        P.add(rest.pop(0))
        for r in range(4): P.e(f"v_fma_f32 v{O+8*row+r}, v{c2}, v{VA+8+r}, v{O+8*row+r}\nv_fma_f32 v{O+8*row+4+r}, v{c2}, v{VA+12+r}, v{O+8*row+4+r}")
        for r in range(4): P.e(f"v_fma_f32 v{O+8*row+r}, -v{c2+1}, v{VA+12+r}, v{O+8*row+r}\nv_fma_f32 v{O+8*row+4+r}, v{c2+1}, v{VA+8+r}, v{O+8*row+4+r}")
        P.add(rest.pop(0))
        for z in range(4): P.e(f"v_cvt_pk_bf16_f32 v{24+4*row+z}, v{O+8*row+2*z}, v{O+8*row+2*z+1}")
        P.e(f"ds_write_b128 {'v11' if row else 'v6'}, {vr(24+4*row,4)}")
    P.e(f"""
    s_lshl_b32 {sE1}, {sW}, 4
    s_mul_i32 {sE1}, {sE1}, 28672
    s_lshl_b32 {sE3}, {sK}, 10
    s_add_u32 {sE1}, {sE1}, {sE3}
    s_lshl_b32 {sE3}, {sP}, 7
    s_add_u32 {sE1}, {sE1}, {sE3}
    s_add_u32 {sE1}, {sE1}, {TBUF}
    s_add_u32 {sE3}, {sE1}, {8*28672}
    s_waitcnt lgkmcnt(0)
    ds_read_b128 v[24:27], v7
    ds_read_b128 v[28:31], v7 offset:1024
    """)
    P.e(f"buffer_store_dwordx4 v[24:27], v8, {WS_}, {sE1} offen sc1", 'T')
    P.e(f"buffer_store_dwordx4 v[28:31], v8, {WS_}, {sE3} offen sc1", 'T')
    assert len(rest) == 2
    P.e(f"s_mul_i32 {sE1}, {sE}, 57344\ns_mul_i32 {sE2}, {sW}, 14336\ns_add_u32 {sE1}, {sE1}, {sE2}\ns_add_u32 {sE1}, {sE1}, {IFT}\ns_add_u32 {sE2}, {sE2}, {IFL}")
    P.add(rest)
    stamp(P, 9)
    GA = [32 + 16 * i for i in range(4)]
    D1, SA = 96, 112
    XR, XU, DPF = 128, 136, 152
    for u in range(4, HD): P.add(hload(u))
    pre = lines(f"""
    v_and_b32 v23, 31, v0
    v_mul_u32_u24 v2, 57344, v23
    v_lshrrev_b32 v24, 5, v0
    v_lshl_add_u32 v2, v24, 4, v2
    s_mul_i32 {sDB0}, {sN2}, 896
    s_lshl_b32 {sE1}, {sE}, 7
    s_add_u32 {sDB0}, {sDB0}, {sE1}
    s_and_b32 {sE1}, {sW}, 1
    s_lshl_b32 {sE2}, {sE1}, 6
    s_add_u32 {sDB0}, {sDB0}, {sE2}
    s_mul_i32 {sE1}, {sE1}, 28672
    s_add_u32 {sE1}, {sE1}, {IFL}
    v_add_u32 v3, {sE1}, {L16}
    v_bfe_u32 v25, v0, 2, 3
    v_lshlrev_b32 v4, 7, v25
    v_bfe_u32 v25, v0, 4, 1
    v_xor_b32 v25, v25, v24
    v_lshl_add_u32 v4, v25, 6, v4
    v_and_b32 v25, 3, v0
    v_lshl_add_u32 v4, v25, 4, v4
    s_lshr_b32 {sE1}, {sW}, 1
    s_mul_i32 {sE1}, {sE1}, 28672
    s_add_u32 {sE1}, {sE1}, {TLD}
    v_add_u32 v4, {sE1}, v4
    """)
    for lam in range(1, 4):
        pre += [f"s_xor_b32 {sE1}, {sW}, {lam}", f"s_mul_i32 {sE1}, {sE1}, 12288", f"s_add_u32 {sE1}, {sE1}, {IMG+(lam-1)*4096}", f"v_add_u32 v{4+lam}, {sE1}, {L16}"]
    pre += [f"s_mul_i32 {sE1}, {sW}, 12288", f"s_add_u32 {sE1}, {sE1}, {IMG}", f"v_add_u32 v8, {sE1}, {L16}"]
    pre += [f"s_mul_i32 {sW2A}, {sT}, 57344", f"s_mul_i32 {sW2B}, {sW}, 14336", f"s_add_u32 {sW2A}, {sW2A}, {sW2B}", f"s_add_u32 {sW2A}, {sW2A}, {TBUF}", f"s_add_u32 {sW2B}, {sW2B}, {TLD}"]
    pre += [f"s_mov_b32 {sDB1}, {f32bits(-math.log2(math.e)):#x}", f"s_add_u32 {sE4}, {sE4}, {HF1-HF0}"]
    pre += [f"s_lshl_b32 {sE1}, {sW}, 12", f"s_lshl_b32 {sE2}, {sBID}, 4", f"s_add_u32 {sE1}, {sE1}, {sE2}", f"s_add_u32 {sE1}, {sE1}, {TF}"]
    pre += [f"s_lshr_b32 {sE2}, {sT}, 3", f"s_lshl_b32 {sE2}, {sE2}, 12", f"s_and_b32 {sE3}, {sW}, 1", f"s_mul_i32 {sE3}, {sE3}, 1792", f"s_add_u32 {sE2}, {sE2}, {sE3}", f"s_add_u32 {sE2}, {sE2}, {TF}"]
    pre += ["v_min_u32 v9, 47, v0", "v_lshlrev_b32 v9, 4, v9"]
    spine = []
    for u in range(28):
        for lam in range(4):
            th, dt = lam >> 1, lam & 1
            spine.append(f"{M32} {vr(GA[lam],16)}, {ar(8*u+4*dt,4)}, {vr(HB+8*((u+4)%HD)+4*th,4)}, {vr(GA[lam],16) if u else 0}")
    n0 = len(spine)
    for z in range(28): spine.append(f"{M32} {vr(D1,16)}, {ar(112+4*z,4)}, {ar(4*z,4)}, {vr(D1,16) if z else 0}")
    last = len(spine) - 1
    ms = [(0, 12, x) for x in pre]
    tfl = [f"buffer_load_dword v10, {L16}, {WS_}, {sE2} offen sc1", f"buffer_load_dword v11, v9, {WS_}, {sE2} offen offset:1024 sc1"]
    hl = [(12, 13, h0l)]
    for u in range(HD, 28):
        if u == 12: hl.append((16, 17, flag_set(sE1, 'T')))
        if u == 14: hl.append((24, 25, poll_check('h1', [h0l], [14])))
        if u == 16:
            hl.append((32, 34, [f"buffer_load_dwordx4 {vr(XR,4)}, v2, {X_}, {sDB0} offen"]))
            hl.append((32, 34, [f"buffer_load_dwordx4 {vr(XR+4,4)}, v2, {X_}, {sDB0} offen offset:32"]))
            hl.append((32, 34, [f"s_mov_b32 {sE3}, {DP}", f"buffer_load_dwordx4 {vr(DPF,4)}, {L16}, {TAB_}, {sE3} offen"]))
            hl.append((32, 34, [f"buffer_load_dwordx4 {vr(DPF+4,4)}, {L16}, {TAB_}, {sE3} offen offset:1024"]))
        if u == 22: hl.append((56, 57, tfl))
        for k, grp in enumerate(hload(u)): hl.append((4 * (u - HD) + 1 + 2 * k, 4 * (u - HD) + 3 + 2 * k, grp))
    hl.sort(key=lambda x: x[0])
    TG = 80
    hl.append((TG, TG, poll_check('t', tfl, [10, 11])))
    for u in range(14):
        hl.append((TG + 2 * u, TG + 2 * u + 2, [I(f"s_add_u32 {sC}, {sW2A}, {u*1024}")] + dma(WS_, L16, sC, (sW2B, u * 1024), 0, 'Tl', 'sc1')))
    rd_ = [(13, 13, [WaitVM('iF'), I('s_barrier')])]
    for z in range(28): rd_.append((max(13, 4 * (z >> 1) + 3), 4 * (z >> 1) + 18, I(f"ds_read_b128 {ar(4*z,4)}, v3 offset:{1024*z}", 'ifr')))
    for u in range(NW2R, 28):
        for x in w2_tr(u): rd_.append((60, 72, x))
    rd_.append((74, TG - 1, [I('s_waitcnt lgkmcnt(0)'), I('s_barrier')]))
    rd_.append((n0 - 1, n0 - 1, [WaitVM('Tl'), I('s_barrier')]))
    for z in range(28): rd_.append((n0 - 1, max(n0 - 1, n0 + z - 4), f"ds_read_b128 {ar(112+4*z,4)}, v4 offset:{1024*z}"))
    xs = []
    for qq in range(2):
        for z in range(2): xs.append((70, 100, f"v_permlane32_swap_b32 v{XR+4*qq+z}, v{XR+4*qq+2+z}"))
    for z in range(8):
        xs.append((70, 100, f"v_lshlrev_b32 v{XU+2*z}, 16, v{XR+z}"))
        xs.append((70, 100, f"v_and_b32 v{XU+2*z+1}, {sMASK}, v{XR+z}"))
    red = []
    for lam in range(1, 4):
        for q in range(4): red.append((n0 + 1, n0 + 6, I(f"ds_write_b128 v{4+lam}, {vr(GA[lam]+4*q,4)} offset:{1024*q}", 'pw')))
    red.append((n0 + 1, n0 + 8, [WaitLG('pw'), I('s_barrier')]))
    for lam in range(1, 4):
        for q in range(4): red.append((n0 + 1, n0 + 12, f"ds_read_b128 {vr(GA[lam]+4*q,4)}, v8 offset:{(lam-1)*4096+1024*q}"))
    Gq = GA[0]
    for quad in range(4):
        r = [4 * quad + k for k in range(4)]
        for lam in range(1, 4):
            for k in r: red.append((n0 + 1, last, f"v_add_f32 v{Gq+k}, v{Gq+k}, v{GA[lam]+k}"))
        T = GA[1]
        for k in r: red.append((n0 + 1, last, f"v_mul_f32 v{T+k}, {sDB1}, v{Gq+k}"))
        for k in r: red.append((n0 + 1, last, f"v_exp_f32 v{T+k}, v{T+k}"))
        for k in r: red.append((n0 + 1, last, f"v_add_f32 v{T+k}, 1.0, v{T+k}"))
        for k in r: red.append((n0 + 1, last, f"v_rcp_f32 v{T+k}, v{T+k}"))
        for k in r: red.append((n0 + 1, last, f"v_mul_f32 v{Gq+k}, v{Gq+k}, v{T+k}"))
    stm = [(4, 4, stamp_i(10)), (56, 56, stamp_i(11)), (n0 - 2, n0 - 2, stamp_i(12))] if STAMPS and not EARLY else []
    P.add(weave(spine, [ms, hl, rd_, xs, red, stm], cap=5, report=rep))
    for z in range(8): P.e(f"v_cvt_pk_bf16_f32 v{24+z}, v{D1+2*z}, v{D1+2*z+1}")
    for ss in range(2): P.e(f"{M32} {vr(SA,16)}, {vr(24+4*ss,4)}, {vr(DPF+4*ss,4)}, {vr(SA,16) if ss else 0}")
    for r in range(16): P.e(f"v_fma_f32 v{Gq+r}, v{SA+r}, v{Gq+r}, v{XU+r}")
    for z in range(8): P.e(f"v_cvt_pk_bf16_f32 v{24+z}, v{Gq+2*z}, v{Gq+2*z+1}")
    for qq in range(2):
        for z in range(2): P.e(f"v_permlane32_swap_b32 v{24+4*qq+z}, v{24+4*qq+2+z}")
    P.e(f"buffer_store_dwordx4 v[24:27], v2, {OUT_}, {sDB0} offen")
    P.e(f"buffer_store_dwordx4 v[28:31], v2, {OUT_}, {sDB0} offen offset:32")
    stamp_out(P, 13)

def build():
    rep = []
    P = Prog(); main(P, rep)
    P.raw("L_end:"); P.e("s_endpgm")
    aux(P)
    body = P.finalize() + "".join(slow_paths)
    print(P.stats, file=sys.stderr)
    for r in rep: print(r, sum(max(32, 8 + 4 * x) for x in r[1:]), file=sys.stderr)
    lbl = NAME + "_kernel"
    s = f"; @launch grid=({NAUX+NMAIN},1,1) block=(256,1,1) lds=163840\n"
    s += '.amdgcn_target "amdgcn-amd-amdhsa--gfx950"\n.text\n' + G.kernel_text(lbl, body)
    s += '.section .rodata,"a"\n' + G.descriptor(lbl) + tables()
    return s
if __name__ == "__main__":
    STAMPS = 'stamps' in sys.argv
    EARLY = 'early' in sys.argv
    for a in sys.argv:
        if a.startswith('exfil='):
            EXFIL = a[6:]; STAMPS = '-' in EXFIL
    txt = build()
    open(sys.argv[1], "w").write(txt)
```

```python
import re
REG_RE = re.compile(r'(?<![\w.])([vas])\[(\d+):(\d+)\]|(?<![\w.])([vas])(\d+)(?![\w\[])|(?<![\w.])(vcc|exec|m0|scc)(?:_lo|_hi)?(?![\w])')
TRANS = ('v_exp_f32', 'v_log_f32', 'v_rcp_f32', 'v_rsq_f32', 'v_sqrt_f32', 'v_sin_f32', 'v_cos_f32', 'v_rcp_iflag_f32')

def regs_of(text):
    out = []
    for m in REG_RE.finditer(text):
        if m.group(1):
            out.append([(m.group(1), i) for i in range(int(m.group(2)), int(m.group(3)) + 1)])
        elif m.group(4):
            out.append([(m.group(4), int(m.group(5)))])
        else:
            out.append([(m.group(6), 0)])
    return out

class I:
    __slots__ = ('text', 'tag', 'op', 'kind', 'defs', 'uses', 'w', 'mf', 'note')
    def __init__(self, text, tag=None):
        self.text = text.strip(); self.tag = tag; self.note = None
        parts = self.text.split(None, 1)
        self.op = op = parts[0]
        rest = parts[1] if len(parts) > 1 else ''
        ops = [x.strip() for x in rest.split(',')] if rest else []
        R = [sum(regs_of(o.split(' ')[0] if not o.startswith(('-', 'abs', '|')) else o), []) for o in ops]
        flat = lambda L: set(sum(L, []))
        self.defs = set(); self.uses = set(); self.mf = None; self.w = 1
        if op.startswith('v_mfma'):
            self.kind = 'mfma'; self.defs = set(R[0]); self.uses = flat(R[1:])
            passes = 8 if '32x32' in op else (4 if '16x16' in op else 2)
            self.mf = dict(passes=passes, D=tuple(R[0]), A=set(R[1]), B=set(R[2]), C=tuple(R[3]))
            self.w = 2
        elif op.startswith('ds_read'):
            self.kind = 'ds'; self.defs = set(R[0]); self.uses = flat(R[1:])
        elif op.startswith('ds_write'):
            self.kind = 'ds'; self.uses = flat(R)
        elif op.startswith('buffer_load'):
            self.kind = 'vm'
            if re.search(r'\blds\b', rest):
                self.uses = flat(R) | {('m0', 0)}
            else:
                self.defs = set(R[0]); self.uses = flat(R[1:])
                if 'd16' in op: self.uses |= self.defs
        elif op.startswith(('buffer_store', 'buffer_atomic')):
            self.kind = 'vm'; self.uses = flat(R)
        elif op.startswith('v_'):
            self.kind = 'valu'
            base = op.replace('_e32', '').replace('_e64', '')
            self.defs = set(R[0]); self.uses = flat(R[1:])
            if base.startswith('v_cmp'):
                pass
            if base.startswith('v_permlane') and 'swap' in base:
                self.defs = flat(R); self.uses = flat(R)
            if base.startswith(('v_fmac', 'v_dot2c', 'v_writelane')):
                self.uses |= self.defs
            if base.startswith(('v_addc_co', 'v_add_co', 'v_sub_co', 'v_subb_co')):
                self.defs |= set(R[1]); self.uses = flat(R[2:])
            if base in TRANS: self.w = 2
        elif op in ('s_waitcnt', 's_barrier', 's_nop', 's_endpgm', 's_sleep', 's_setprio') or op.startswith(('s_branch', 's_cbranch')):
            self.kind = 'ctl'
            if op.startswith('s_cbranch_vcc'): self.uses = {('vcc', 0)}
        elif op.startswith(('s_load', 's_memtime', 's_memrealtime')):
            self.kind = 'smem'; self.defs = set(R[0]); self.uses = flat(R[1:])
        elif op.startswith('s_'):
            self.kind = 'salu'
            if op.startswith('s_cmp'):
                self.uses = flat(R)
            else:
                self.defs = set(R[0]); self.uses = flat(R[1:])
                if 'saveexec' in op: self.defs |= {('exec', 0)}
        else:
            raise ValueError('unknown instruction: ' + text)
    def is_trans(self):
        return self.op.replace('_e32', '').replace('_e64', '') in TRANS

class WaitVM:
    def __init__(self, tag): self.tag = tag; self.w = 1
class WaitLG:
    def __init__(self, tag): self.tag = tag; self.w = 1
class Raw:
    def __init__(self, text, sync=False): self.text = text; self.sync = sync; self.w = 0

def ins(x):
    if isinstance(x, str): return I(x)
    return x

class Prog:
    def __init__(self): self.items = []
    def e(self, text, tag=None):
        for line in text.strip().split('\n'):
            line = line.split(';')[0].strip()
            if line: self.items.append(I(line, tag))
        return self
    def add(self, items):
        for x in items:
            if isinstance(x, (list, tuple)): self.add(x)
            else: self.items.append(ins(x))
        return self
    def raw(self, text, sync=False): self.items.append(Raw(text, sync)); return self
    def waitvm(self, tag): self.items.append(WaitVM(tag)); return self
    def waitlg(self, tag): self.items.append(WaitLG(tag)); return self

    def finalize(self, align8=False):
        out = []
        vm = []; lg = []
        hist = []
        pos = [0]
        stats = dict(nops=0, waits=0, maxvm=0, n=0)
        def emit_text(t, states=1):
            out.append('    ' + t); pos[0] += states
        def do_wait(nvm=None, nlg=None):
            parts = []
            if nvm is not None:
                c = min(nvm, 63); parts.append(f'vmcnt({c})'); del vm[:len(vm) - c]
            if nlg is not None:
                c = min(nlg, 15); parts.append(f'lgkmcnt({c})'); del lg[:len(lg) - c]
            emit_text('s_waitcnt ' + ' '.join(parts)); stats['waits'] += 1
        def need(lst, regs):
            n = None
            for idx, (tag, defs) in enumerate(lst):
                if defs & regs: n = len(lst) - 1 - idx
            return n
        for it in self.items:
            if isinstance(it, Raw):
                out.append(it.text)
                if it.sync: vm.clear(); lg.clear(); hist.clear()
                continue
            if isinstance(it, (WaitVM, WaitLG)):
                lst = vm if isinstance(it, WaitVM) else lg
                tags = it.tag if isinstance(it.tag, (list, tuple, set)) else [it.tag]
                n = None
                for idx, (tag, defs) in enumerate(lst):
                    if tag in tags or it.tag == '*': n = len(lst) - 1 - idx
                if n is not None:
                    if lst is vm: do_wait(nvm=n)
                    else: do_wait(nlg=n)
                continue
            x = it
            if x.op == 's_waitcnt':
                m = re.search(r'vmcnt\((\d+)\)', x.text)
                if m: del vm[:max(0, len(vm) - int(m.group(1)))]
                m = re.search(r'lgkmcnt\((\d+)\)', x.text)
                if m: del lg[:max(0, len(lg) - int(m.group(1)))]
                emit_text(x.text); continue
            touched = x.uses | x.defs
            nv = need(vm, touched); nl = need(lg, touched)
            if nl is not None and any(t == '__smem' for t, d in lg): nl = 0
            if nv is not None or nl is not None: do_wait(nv, nl)
            req = 0
            for (p, ppos) in hist:
                dist = pos[0] - ppos - 1
                r = hazard(p, x)
                if r > dist: req = max(req, r - dist)
            while req > 0:
                k = min(req, 16); emit_text(f's_nop {k-1}', k); req -= k; stats['nops'] += 1
            if x.op == 's_nop':
                emit_text(x.text, int(x.text.split()[1]) + 1)
            else:
                hist.append((x, pos[0])); emit_text(x.text)
            stats['n'] += 1
            while hist and pos[0] - hist[0][1] > 24: hist.pop(0)
            if x.kind == 'vm':
                vm.append((x.tag, x.defs)); stats['maxvm'] = max(stats['maxvm'], len(vm))
                assert len(vm) <= 63, 'vmcnt overflow at ' + x.text
            elif x.kind == 'ds': lg.append((x.tag, x.defs))
            elif x.kind == 'smem': lg.append(('__smem', x.defs)); lg.append(('__smem', x.defs))
        self.stats = stats
        return '\n'.join(out) + '\n'

def isv(regs): return {r for r in regs if r[0] in 'va'}
def iss(regs): return {r for r in regs if r[0] == 's' or r[0] == 'vcc'}

def hazard(p, x):
    r = 0
    if p.kind == 'valu':
        pv = isv(p.defs); ps = iss(p.defs)
        if x.kind == 'mfma' and pv & x.uses: r = max(r, 2)
        if x.kind == 'valu':
            if x.op.startswith('v_permlane') and pv & x.uses: r = max(r, 2)
            if 'dpp' in x.text and pv & x.uses: r = max(r, 2)
            if x.op.startswith(('v_readfirstlane', 'v_readlane')) and pv & x.uses: r = max(r, 1)
            if p.is_trans() and pv & x.uses: r = max(r, 1)
            if ps & x.uses: r = max(r, 4 if x.op.startswith(('v_readlane', 'v_writelane')) else 2)
            if 'sdwa' in p.text and pv & (x.uses | x.defs): r = max(r, 1)
        if x.kind == 'vm' and ps & x.uses: r = max(r, 5)
        if x.kind in ('salu', 'ctl', 'smem') and ps & x.uses: r = max(r, 1)
    elif p.kind == 'mfma':
        D = set(p.mf['D']); n = p.mf['passes']
        long_ = {2: 5, 4: 8, 8: 12}[n]
        if x.kind == 'mfma':
            if D & (x.mf['A'] | x.mf['B']): r = max(r, long_)
            if D & set(x.mf['C']):
                if x.mf['C'] == p.mf['D'] and x.mf['passes'] == n: r = max(r, 2 if n == 2 else 0)
                else: r = max(r, n + 2)
            elif D & x.defs: r = max(r, n + 2)
        elif x.kind in ('valu', 'vm', 'ds'):
            if D & (x.uses | x.defs): r = max(r, long_)
            if x.kind == 'valu' and set(p.mf['C']) & x.defs: r = max(r, n - 1)
    elif p.kind == 'salu':
        if ('m0', 0) in p.defs and ('m0', 0) in x.uses: r = max(r, 1)
    elif p.kind == 'vm':
        if p.op.startswith('buffer_store') and ('x4' in p.op or 'x3' in p.op):
            data = set(regs_of(p.text.split(None, 1)[1].split(',')[0])[0])
            if data & x.defs: r = max(r, 2)
    return r

def flat_items(item):
    if isinstance(item, (list, tuple)):
        o = []
        for y in item: o += flat_items(y)
        return o
    return [ins(item)]

def yds_speed(items, n):
    import numpy as np
    speed = np.zeros(n)
    alive = list(range(n)); its = [(a, b, w) for a, b, w in items if w > 0]
    while its and alive:
        m = len(alive)
        W = np.zeros((m + 1, m + 1))
        for a, b, w in its: W[a, b] += w
        S = np.cumsum(np.cumsum(W[::-1], axis=0)[::-1], axis=1)[:m, :m]
        L = np.arange(m)[None, :] - np.arange(m)[:, None] + 1
        D = np.where(L > 0, S / np.maximum(L, 1), -1)
        s0, e0 = np.unravel_index(np.argmax(D), D.shape)
        for g in alive[s0:e0 + 1]: speed[g] = D[s0, e0]
        k = e0 - s0 + 1
        alive = alive[:s0] + alive[e0 + 1:]
        nxt = []
        for a, b, w in its:
            if a >= s0 and b <= e0: continue
            a2 = a if a < s0 else (s0 if a <= e0 else a - k)
            b2 = b if b < s0 else (s0 - 1 if b <= e0 else b - k)
            if b2 < a2: b2 = a2 = max(min(a2, len(alive) - 1), 0)
            nxt.append((a2, b2, w))
        its = nxt
    return speed

def weave(spine, streams, cap=0, report=None):
    n = len(spine)
    streams = [[(a, min(b, n - 1), flat_items(c)) for a, b, c in s] for s in streams]
    for s in streams:
        for k in range(len(s) - 2, -1, -1):
            if s[k][1] > s[k + 1][1]: s[k] = (s[k][0], s[k + 1][1], s[k][2])
        for k in range(1, len(s)):
            if s[k][0] < s[k - 1][0]: s[k] = (s[k - 1][0], s[k][1], s[k][2])
        for a, b, c in s: assert a <= b, ('earliest > deadline', a, b, [getattr(y, 'text', y) for y in c])
    speed = yds_speed([(max(a, 0), b, sum(y.w for y in c)) for s in streams for a, b, c in s if b >= 0], n)
    heads = [0] * len(streams)
    out = []; use = []
    credit = 0.0
    for g in range(-1, n):
        if g >= 0:
            if spine[g] is not None: out += flat_items(spine[g])
            credit = (max(min(credit, 1.5), -2.0) if g else 0.0) + max(speed[g], cap)
        load = 0
        while True:
            cand = sorted((s[heads[si]][1], si) for si, s in enumerate(streams) if heads[si] < len(s) and s[heads[si]][0] <= g)
            pick = None
            for b, si in cand:
                w = sum(y.w for y in streams[si][heads[si]][2])
                if b <= g or (g >= 0 and (w <= credit + 0.5 or (load == 0 and credit > 0 and b == cand[0][0]))):
                    pick = (si, w); break
            if pick is None: break
            si, w = pick
            out += streams[si][heads[si]][2]; load += w; heads[si] += 1; credit -= w
        use.append(load)
    for si, s in enumerate(streams):
        assert heads[si] == len(s), ('unplaced items', si, s[heads[si]][1], n)
    if report is not None: report.append(use)
    return out
```

```python
import sys, math
import numpy as np
from asmlib import *
import gen as G
from gen import (NAME, SLOT, X_, W1_, W3_, W2_, WR_, WI_, OUT_, WS_, TAB_, DBG_,
                 sW, sI, sJ, sP, sK, sT, sE, sN2, sMASK, sONES, sW4K, sA, sB, sC, sD, sH0, sH1,
                 vr, ar, XF, ACC, ABUF, L16, f32bits, bfbits, dma, cosr, PAIRS)
NAUX = 32; NMAIN = 224
HBUF = 0; YBUF = 0x700000; TBUF = 0x8C0000; W2F = 0xA80000
FLG = 0xC10000
HF = [FLG + 0x4000 * k for k in range(4)]; YF = FLG + 0x10000; TF = YF + 14336; WF = FLG + 0x14000
STAMP = 0xC30000; WS_SIZE = 0xC50000
DP = 0; TAB_SIZE = 2048
sBID = 's59'; sE1, sE2, sE3, sE4 = 's70', 's71', 's4', 's5'
sF1, sF2, sF3, sF4 = 's64', 's65', 's68', 's69'
ROT = [f's{72+i}' for i in range(7)]; DBO = [f's{79+i}' for i in range(7)]
M32 = "v_mfma_f32_32x32x16_bf16"; M16 = "v_mfma_f32_16x16x32_bf16"
STAMPS = False; EXFIL = None; SPIN = 50000
OPT = dict(NI1=0)
ST0 = 86
SEL = ['start', 'iss', 'arr', 'p0', 'p1', 'g2', 'idft', 'end']
SELA = ['start', 'prep', 'y', 'c0', 'c64', 'c128', 'inv', 'end']
ROLE = ['main']
def stamp_i(n):
    sel = SEL if ROLE[0] == 'main' else SELA
    if not STAMPS or n not in sel: return []
    k = sel.index(n)
    return [I(f"s_memtime s[{ST0+2*k}:{ST0+1+2*k}]")]
def stamp(P, n): P.add(stamp_i(n))
def stamp_out(P, n, idreg):
    if EXFIL is not None: return exfil_end(P, n)
    if not STAMPS: return
    P.e("s_waitcnt vmcnt(0)")
    P.e(f"s_memtime s[{ST0+2*n}:{ST0+1+2*n}]\ns_memrealtime s[4:5]\ns_waitcnt lgkmcnt(0)")
    P.e(f"s_lshl_b32 {sA}, {idreg}, 2\ns_add_u32 {sA}, {sA}, {sW}\ns_lshl_b32 {sA}, {sA}, 6\ns_add_u32 {sA}, {sA}, {STAMP}")
    P.e("v_mov_b32 v2, 0")
    for k in range(n + 1):
        P.e(f"v_mov_b32 v3, s{ST0+2*k}\nbuffer_store_dword v3, v2, {WS_}, {sA} offen offset:{4*k}")
    P.e(f"v_mov_b32 v3, s6\nbuffer_store_dword v3, v2, {WS_}, {sA} offen offset:56")
    P.e(f"v_mov_b32 v3, s4\nbuffer_store_dword v3, v2, {WS_}, {sA} offen offset:60")
def exfil_end(P, n):
    if getattr(P, 'exf', False): return
    P.exf = True
    P.e(f"s_waitcnt vmcnt(0)\ns_memtime s[{ST0+2*n}:{ST0+1+2*n}]\ns_waitcnt lgkmcnt(0)")
    a, b = [SEL.index(x) for x in EXFIL.split('-')]
    P.e(f"s_sub_u32 {sB}, s{ST0+2*int(b)}, s{ST0+2*int(a)}\ns_lshr_b32 {sB}, {sB}, 2\ns_add_u32 {sB}, {sB}, 10000\ns_mov_b32 s3, 0")
    P.raw("L_exf:", sync=True)
    P.e(f"""s_memrealtime s[4:5]
    s_waitcnt lgkmcnt(0)
    s_sub_u32 s4, s4, s6
    s_cmp_ge_u32 s4, {sB}
    s_cbranch_scc1 L_end
    s_add_u32 s3, s3, 1
    s_cmp_lt_u32 s3, 100000
    s_cbranch_scc1 L_exf""")

def tables():
    def dwords(v):
        w = [v[i] | (v[i + 1] << 16) for i in range(0, len(v), 2)]
        return ''.join('.long ' + ','.join(f'{x:#x}' for x in w[i:i + 8]) + '\n' for i in range(0, len(w), 8))
    s = '.p2align 8\nTABS:\n'
    v = []
    for ss in range(2):
        for l in range(64):
            for e in range(8):
                n1 = l & 31; row = 16 * ss + 8 * (e >> 2) + 4 * (l >> 5) + (e & 3)
                q = row >> 1
                if q == 0: val = 1.0 if (n1 & 1) == row else 0.0
                else: val = cosr(q * n1, 32) if row % 2 == 0 else cosr(q * n1 + 8, 32)
                v.append(bfbits(val))
    return s + dwords(v)

slow_paths = []
def poll_check(name, loads, regs):
    t = regs[0]
    red = [f"v_min_u32 v{t}, v{t}, v{r}" for r in regs[1:]]
    slow_paths.append(f"L_slow_{name}:\n    s_mov_b32 s3, 0\nL_retry_{name}:\n    s_sleep {OPT.get('SLEEP', 8)}\n" + "".join(f"    {x}\n" for x in loads) + "    s_waitcnt vmcnt(0)\n" +
                      "".join(f"    {x}\n" for x in red) +
                      f"    v_cmp_eq_u32 vcc, 0, v{t}\n    s_add_u32 s3, s3, 1\n    s_cbranch_vccz L_ok_{name}\n    s_cmp_lt_u32 s3, {SPIN}\n"
                      f"    s_cbranch_scc1 L_retry_{name}\n    s_branch L_ok_{name}\n")
    return stamp_i('<' + name) + [I(x) for x in red] + [I(f"v_cmp_eq_u32 vcc, 0, v{t}"), I(f"s_cbranch_vccnz L_slow_{name}"), Raw(f"L_ok_{name}:")] + stamp_i(name + '>')
def flag_set(srd, soff, tags, one, zero):
    return stamp_i('<f' + str(tags)) + [WaitVM(tags)] + stamp_i('f' + str(tags) + '>') + [I("s_mov_b64 exec, 1"), I(f"buffer_store_dword v{one}, v{zero}, {srd}, {soff} offen sc1"), I("s_mov_b64 exec, -1")]
def lines(t): return [x.strip() for x in t.strip().split('\n') if x.strip()]
def spread(P, groups, work):
    k = 0
    for gi, grp in enumerate(groups):
        P.add(grp); n = (len(work) * (gi + 1)) // len(groups); P.add(work[k:n]); k = n

def dbslot(d, c): return ([9, 0, 1, 2, 3, 4, 5] if d == 0 else [6, 7, 8, 9, 0, 1, 2])[c]
SCR = 143360
def db_dma(d, c):
    base = dbslot(d, c) * SLOT; tag = f"db{d}_{c}"
    pre = [I(f"s_add_u32 {DBO[c]}, {DBO[c]}, 128")] if d else []
    return [pre + dma(W1_, 'v4', DBO[c], (sW4K, base), 0, tag), dma(W1_, 'v5', DBO[c], None, 1024, tag),
            dma(W3_, 'v4', DBO[c], (sW4K, base + 2048), 0, tag), dma(W3_, 'v5', DBO[c], None, 1024, tag)]
def db_tr(d, s, m, fb, dst, tag=None):
    c, q = s >> 2, s & 3
    off = dbslot(d, c) * SLOT + q * 4096 + m * 2048
    win, off = off >> 16, off & 0xffff
    base = f"v{11 + 2 * win + fb}"
    return [I(f"ds_read_b64_tr_b16 {ar(dst, 2)}, {base} offset:{off}", tag), I(f"ds_read_b64_tr_b16 {ar(dst + 2, 2)}, {base} offset:{off + 512}", tag)]

def entry(P):
    if STAMPS: P.e("s_memrealtime s[6:7]")
    stamp(P, 'start')
    P.e(f"s_cmp_ge_u32 s2, {NAUX+NMAIN}\ns_cbranch_scc1 L_end")
    for srd, off in ((8, 0), (12, 32), (16, 40), (20, 48), (36, 72), (44, 64), (24, 8), (28, 16), (32, 56)):
        P.e(f"s_load_dwordx2 s[{srd}:{srd+1}], s[0:1], {off}")
    P.e("s_getpc_b64 s[40:41]\ns_add_u32 s40, s40, TABS@rel32@lo+4\ns_addc_u32 s41, s41, TABS@rel32@hi+12")
    for srd, size in ((8, 1835008), (12, 1605632), (16, 1605632), (20, 1605632), (24, 921600), (28, 921600), (32, 1835008), (36, WS_SIZE), (40, TAB_SIZE), (44, 256)):
        P.e(f"s_mov_b32 s{srd+2}, {size}\ns_mov_b32 s{srd+3}, 0x20000")
    P.e(f"""
    v_lshrrev_b32 v2, 6, v0
    v_and_b32 v0, 63, v0
    v_readfirstlane_b32 {sW}, v2
    v_lshlrev_b32 {L16}, 4, v0
    s_mov_b32 {sMASK}, 0xffff0000
    v_lshrrev_b32 v23, 3, v0
    v_and_b32 v24, 7, v0
    v_lshrrev_b32 v25, 1, v23
    s_cmp_lt_u32 s2, {NAUX}
    s_cbranch_scc1 L_aux
    """)

def aux(P, rep):
    P.raw("L_aux:", sync=True)
    ROLE[0] = "aux"
    sQ, sKH = sP, sK
    WL = 65536; YL = 0; ZL = 65536; TL = 131072
    CC, SS, NS, IC, IS, IN = 0, 16, 32, 48, 64, 80
    YB = [96, 112]; ZB = [128, 160]
    WV = 144; XA = [16, 32]; VA = [48, 64]; OB = [80, 104]
    P.e(f"""
    s_getpc_b64 s[72:73]
    s_add_u32 s72, s72, {NAME}_kernel@rel32@lo+4
    s_addc_u32 s73, s73, {NAME}_kernel@rel32@hi+12
    s_mov_b32 s74, L_code_end-{NAME}_kernel
    s_mov_b32 s75, 0x20000
    s_lshr_b32 {sA}, s2, 3
    s_lshl_b32 {sA}, {sA}, 2
    s_add_u32 {sA}, {sA}, {sW}
    s_lshl_b32 {sA}, {sA}, 12
    v_and_b32 v2, 31, v0
    v_lshlrev_b32 v2, 7, v2
    buffer_load_dword v31, v2, s[72:75], {sA} offen
    s_and_b32 {sQ}, s2, 15
    s_lshr_b32 {sKH}, s2, 4
    v_mov_b32 v14, 0
    v_mov_b32 v15, 1
    s_lshl_b32 {sF3}, s2, 2
    s_add_u32 {sF3}, {sF3}, {sW}
    s_sub_u32 {sE1}, 32, {sQ}
    s_cmp_eq_u32 {sQ}, 0
    s_cselect_b32 {sE1}, 16, {sE1}
    s_cselect_b64 s[66:67], -1, 0
    s_and_b32 {sA}, {sW}, 1
    s_cmp_eq_u32 {sA}, 0
    s_cselect_b32 {sE2}, {sQ}, {sE1}
    s_mul_i32 {sE3}, {sE2}, 450
    s_mul_i32 {sA}, {sKH}, 224
    s_add_u32 {sE3}, {sE3}, {sA}
    s_add_u32 {sE3}, {sE3}, 2
    s_and_b32 {sE4}, {sE3}, 15
    s_sub_u32 {sE3}, {sE3}, {sE4}
    s_lshr_b32 {sA}, {sW}, 1
    s_mul_i32 {sA}, {sA}, {32*14400}
    s_add_u32 {sE3}, {sE3}, {sA}
    s_lshl_b32 {sF1}, {sW}, 14
    s_add_u32 {sF1}, {sF1}, {WL}
    v_lshrrev_b32 v26, 4, v0
    v_and_b32 v25, 15, v0
    v_lshlrev_b32 v24, 1, v26
    v_xor_b32 v24, v24, v25
    v_mul_u32_u24 v2, 57600, v26
    v_lshl_add_u32 v2, v24, 4, v2
    s_cmp_lt_u32 s2, 28
    s_waitcnt lgkmcnt(0)
    s_cbranch_scc1 L_nozero
    v_mov_b32 v8, 0
    v_mov_b32 v9, 0
    v_mov_b32 v10, 0
    v_mov_b32 v11, 0
    s_sub_u32 {sA}, {sF3}, 112
    s_mul_i32 {sA}, {sA}, 6144
    s_add_u32 {sA}, {sA}, {FLG}
    s_add_u32 {sB}, {sA}, 4096
    """)
    for k in range(4): P.e(f"buffer_store_dwordx4 v[8:11], {L16}, {WS_}, {sA} offen offset:{k*1024} sc1")
    for k in range(2): P.e(f"buffer_store_dwordx4 v[8:11], {L16}, {WS_}, {sB} offen offset:{k*1024} sc1")
    P.e(f"""
    s_sub_u32 {sA}, {sF3}, 112
    s_lshl_b32 {sA}, {sA}, 2
    s_waitcnt vmcnt(0)
    s_mov_b64 exec, 1
    buffer_store_dword v15, v14, {DBG_}, {sA} offen offset:128 sc1
    s_mov_b64 exec, -1
    """)
    P.raw("L_nozero:", sync=True)
    grpW = []
    for mat in range(2):
        for tt in range(2):
            for r in range(4):
                k = (mat * 2 + tt) * 4 + r
                grpW.append([I(f"s_add_u32 {sC}, {sE3}, {(16*tt+r)*14400}")] + dma(WI_ if mat else WR_, 'v2', sC, (sF1, 1024 * k), 0, 'W'))
    w = lines(f"""
    s_lshl_b32 {sA}, {sW}, 4
    v_add_u32 v3, {sA}, v25
    v_lshlrev_b32 v4, 7, v26
    v_add_u32 v6, {sE1}, v4
    v_add_u32 v4, {sQ}, v4
    v_mul_u32_u24 v4, v4, v3
    v_mul_u32_u24 v6, v6, v3
    v_cvt_f32_u32 v4, v4
    v_cvt_f32_u32 v6, v6
    v_cvt_f32_u32 v3, v3
    v_mul_f32 v4, {f32bits(1/2048):#x}, v4
    v_mul_f32 v6, {f32bits(1/2048):#x}, v6
    v_mul_f32 v3, {f32bits(1/64):#x}, v3
    s_mov_b32 {sJ}, {f32bits(2.0 / (2048 * 448)):#x}
    """)
    def pair(kf, base, m2, scale, dc, ds, dn):
        o = [f"v_fmamk_f32 v7, v{kf}, {f32bits(float(m2[0])):#x}, v{base}", f"v_fmamk_f32 v8, v{kf}, {f32bits(float(m2[1])):#x}, v{base}",
             "v_cos_f32 v9, v7", "v_cos_f32 v10, v8", "v_sin_f32 v7, v7", "v_sin_f32 v8, v8"]
        if scale: o += [f"v_mul_f32 v9, {sJ}, v9", f"v_mul_f32 v10, {sJ}, v10", f"v_mul_f32 v7, {sJ}, v7", f"v_mul_f32 v8, {sJ}, v8"]
        return o + ["v_cvt_pk_bf16_f32 v9, v9, v10", "v_cvt_pk_bf16_f32 v10, v7, v8", "v_cvt_pk_bf16_f32 v7, -v7, -v8",
                    f"v_accvgpr_write_b32 a{dc}, v9", f"v_accvgpr_write_b32 a{ds}, v10", f"v_accvgpr_write_b32 a{dn}, v7"]
    for c in range(2):
        for s in range(2):
            for z in range(4):
                o = 8 * c + 4 * s + z
                w += pair(3, 4 + 2 * c, [32 * s + 16 * (e >> 2) + (e & 3) for e in (2 * z, 2 * z + 1)], True, IC + o, IS + o, IN + o)
    w += [f"s_lshr_b32 {sA}, {sW}, 1", f"s_lshl_b32 {sA}, {sA}, 5", f"v_add_u32 v3, {sA}, v25", "v_lshlrev_b32 v4, 2, v26", "v_cvt_f32_u32 v4, v4"]
    for tt in range(2):
        w += [f"v_add_u32 v5, {16*tt}, v3", "v_cvt_f32_u32 v5, v5", f"v_mul_f32 v5, {f32bits(1/64):#x}, v5", "v_mul_f32 v6, v5, v4"]
        for s in range(2):
            for z in range(4):
                o = 8 * tt + 4 * s + z
                w += pair(5, 6, [32 * s + 16 * (e >> 2) + (e & 3) for e in (2 * z, 2 * z + 1)], False, CC + o, SS + o, NS + o)
    w += [f"v_mov_b32 v{WV+r}, 0" for r in range(112)]
    P.add(grpW[:3]); spread(P, grpW[3:], w)
    stamp(P, 'st')
    zl = [f"buffer_load_dword v29, v28, {DBG_}, 0 offen offset:128 sc1"]
    P.e("v_lshlrev_b32 v28, 2, v25"); P.add(zl)
    P.e(f"v_lshlrev_b32 v3, 1, v25\nv_add_u32 v3, {sE4}, v3\nv_and_b32 v4, 15, v3\nv_lshl_add_u32 v4, v26, 8, v4\nv_add_u32 v4, {sF1}, v4\nv_lshrrev_b32 v3, 4, v3\nv_lshlrev_b32 v5, 1, v26")
    for jl in range(7):
        P.e(f"v_add_u32 v6, {2*jl}, v3\nv_xor_b32 v6, v5, v6\nv_lshl_add_u32 v{16+jl}, v6, 4, v4")
    P.waitvm('W')
    for jl in range(7):
        for k in range(16):
            P.e(f"ds_read_u16_d16_hi v{WV+16*jl+k}, v{16+jl} offset:{1024*k}")
    P.e(f"""
    v_lshrrev_b32 v23, 3, v0
    v_and_b32 v24, 7, v0
    v_bfe_u32 v27, v0, 4, 2
    v_xor_b32 v27, v24, v27
    v_lshlrev_b32 v2, 7, v23
    v_lshl_add_u32 v2, v27, 4, v2
    v_lshlrev_b32 v3, 4, v25
    v_min_u32 v27, 2, v26
    v_lshl_add_u32 v4, v27, 10, v3
    v_add_u32 v4, 4096, v4
    v_lshl_add_u32 v3, v26, 10, v3
    v_lshrrev_b32 v27, 2, v0
    v_lshlrev_b32 v5, 7, v27
    v_bfe_u32 v27, v0, 3, 2
    s_and_b32 {sA}, {sW}, 1
    v_xor_b32 v27, {sA}, v27
    v_lshl_add_u32 v5, v27, 4, v5
    v_bfe_u32 v27, v0, 1, 1
    v_lshl_add_u32 v5, v27, 6, v5
    v_and_b32 v27, 1, v0
    v_lshl_add_u32 v5, v27, 3, v5
    v_xor_b32 v6, 32, v5
    s_lshl_b32 {sA}, {sA}, 12
    s_lshr_b32 {sB}, {sW}, 1
    s_lshl_b32 {sB}, {sB}, 11
    s_add_u32 {sA}, {sA}, {sB}
    s_add_u32 {sA}, {sA}, {ZL}
    v_add_u32 v7, {sA}, {L16}
    v_add_u32 v12, {ZL}, {L16}
    s_bfe_u32 {sA}, {sQ}, 0x20001
    v_xor_b32 v27, {sA}, v26
    v_lshlrev_b32 v27, 1, v27
    v_xor_b32 v27, v27, v24
    v_lshlrev_b32 v8, 7, v25
    v_lshl_add_u32 v8, v27, 4, v8
    s_lshl_b32 {sA}, {sW}, 12
    s_add_u32 {sA}, {sA}, {TL}
    v_add_u32 v8, {sA}, v8
    v_xor_b32 v9, 16, v8
    v_xor_b32 v27, v23, v24
    v_lshlrev_b32 v10, 7, v23
    v_lshl_add_u32 v10, v27, 4, v10
    v_add_u32 v10, {sA}, v10
    v_mul_u32_u24 v11, 28672, v23
    v_lshl_add_u32 v11, v24, 4, v11
    v_add_u32 v13, {8*28672}, v11
    s_mul_i32 {sE1}, {sKH}, 7168
    s_lshl_b32 {sA}, {sW}, 8
    s_add_u32 {sE1}, {sE1}, {sA}
    s_add_u32 {sE1}, {sE1}, {YF}
    s_mul_i32 {sE2}, {sKH}, {7*16*8192}
    s_lshl_b32 {sA}, {sQ}, 13
    s_add_u32 {sE2}, {sE2}, {sA}
    s_lshl_b32 {sF1}, {sW}, 11
    s_add_u32 {sE2}, {sE2}, {sF1}
    s_add_u32 {sE2}, {sE2}, {YBUF}
    s_mul_i32 {sE3}, {sW}, {16*28672}
    s_mul_i32 {sA}, {sKH}, 14336
    s_add_u32 {sE3}, {sE3}, {sA}
    s_lshl_b32 {sA}, {sQ}, 7
    s_add_u32 {sE3}, {sE3}, {sA}
    s_add_u32 {sE3}, {sE3}, {TBUF}
    s_lshl_b32 {sE4}, {sW}, 9
    s_lshl_b32 {sA}, s2, 4
    s_add_u32 {sE4}, {sE4}, {sA}
    s_add_u32 {sE4}, {sE4}, {TF}
    """)
    P.add(poll_check('az', zl, [29]))
    P.e("s_waitcnt lgkmcnt(0)")
    stamp(P, 'prep')
    yl = [f"buffer_load_dword v29, v3, {WS_}, {sE1} offen sc1", f"buffer_load_dword v30, v4, {WS_}, {sE1} offen sc1"]
    P.add(yl); P.add(poll_check('ay', yl, [29, 30]))
    stamp(P, 'y')
    for jl in range(7):
        P.add([I(f"s_add_u32 {sC}, {sE2}, {jl*16*8192}")] + dma(WS_, 'v2', sC, (sF1, YL + 8192 * jl), 0, f'Y{jl}', 'sc1') + dma(WS_, 'v2', sC, None, 1024, f'Y{jl}', 'sc1'))
    order = ['F0', 'F1', 'F2', 'I0', 'F3', 'I1', 'F4', 'I2', 'F5', 'I3', 'F6', 'I4', 'I5', 'I6']
    at = {n: 16 * i for i, n in enumerate(order)}
    spine = []
    for n in order:
        k = int(n[1])
        for k4 in range(4):
            s, term = k4 >> 1, k4 & 1
            for x in range(2):
                for y in range(2):
                    if n[0] == 'F':
                        part, tt = x, y; b = YB[k & 1]; acc = XA[k & 1] + 8 * part + 4 * tt
                        if term == 0: A, B = CC + 8 * tt + 4 * s, b + 8 * part + 4 * s
                        else: A, B = (NS if part else SS) + 8 * tt + 4 * s, b + 8 * (1 - part) + 4 * s
                    else:
                        c, part = x, y; acc = VA[k & 1] + 8 * c + 4 * part
                        A = ZB[k & 1] + 16 * c + 8 * s + 4 * term; B = ((IC, IN), (IS, IC))[part][term] + 8 * c + 4 * s
                    spine.append(f"{M16} {vr(acc,4)}, {ar(A,4)}, {ar(B,4)}, {vr(acc,4) if k4 else 0}")
    N = len(spine)
    def fv(k):
        xa = XA[k & 1]; wv = WV + 16 * k; ops = []
        for r in range(8): ops += [f"v_mul_f32 v{14+(r&1)}, v{xa+8+r}, v{wv+8+r}", f"v_mul_f32 v{wv+8+r}, v{xa+r}, v{wv+8+r}",
                                   f"v_fma_f32 v{xa+r}, v{xa+r}, v{wv+r}, -v{14+(r&1)}", f"v_fma_f32 v{xa+8+r}, v{xa+8+r}, v{wv+r}, v{wv+8+r}"]
        ops += [f"v_cvt_pk_bf16_f32 v{wv+z}, v{xa+2*z}, v{xa+2*z+1}" for z in range(8)]
        return ops + [I(f"ds_write_b128 v7, {vr(wv+4*part,4)} offset:{8192*k+1024*part}", f'zw{k}') for part in range(2)]
    def iv(k):
        v = VA[k & 1]; o = OB[k & 1]; tb = 2048 * (k & 1)
        ops = [f"v_add_f32 v{o+r}, v{v+r}, v{v+8+r}" for r in range(8)] + [f"v_sub_f32 v{v+r}, v{v+r}, v{v+8+r}" for r in range(8)]
        ops += [f"v_cvt_pk_bf16_f32 v{o+8+z}, v{o+2*z}, v{o+2*z+1}" for z in range(4)]
        ops += [f"v_cvt_pk_bf16_f32 v{o+z}, v{v+2*z}, v{v+2*z+1}" for z in range(4)]
        ops += [f"v_cvt_pk_bf16_f32 v{o+4+z}, -v{v+2*z}, -v{v+2*z+1}" for z in range(2)]
        ops += [f"v_cndmask_b32 v{o+12+z}, v{o+2+z}, v{o+z}, s[66:67]" for z in range(2)]
        ops += [f"v_cndmask_b32 v{o+14+z}, v{o+4+z}, v{o+2+z}, s[66:67]" for z in range(2)]
        ops += [I(f"ds_write_b128 v8, {vr(o+8,4)} offset:{tb}", f'tw{k}'), I(f"ds_write_b128 v9, {vr(o+12,4)} offset:{tb}", f'tw{k}')]
        ops2 = [WaitLG(f'tw{k}'), f"ds_read_b128 {vr(o+16,4)}, v10 offset:{tb}", f"ds_read_b128 {vr(o+20,4)}, v10 offset:{tb+1024}"]
        ops3 = [[f"s_add_u32 {sC}, {sE3}, {2048*k}", I(f"buffer_store_dwordx4 {vr(o+16,4)}, v11, {WS_}, {sC} offen sc1", 'T')],
                I(f"buffer_store_dwordx4 {vr(o+20,4)}, v13, {WS_}, {sC} offen sc1", 'T')]
        return ops, ops2, ops3
    ev = []
    ev.append((-1, -1, [WaitVM(['Y0', 'Y1']), I('s_barrier')]))
    for k in range(7):
        st = at[f'F{k}']; lo = -1 if k < 2 else max(at[f'F{k-2}'] + 15, st - 30)
        for part in range(2):
            for s in range(2):
                for t in range(2):
                    ev.append((lo, max(lo, st - 6), I(f"ds_read_b64_tr_b16 {ar(YB[k&1]+8*part+4*s+2*t,2)}, v{5+part} offset:{YL+8192*k+(32*s+16*t)*128}", f'y{k}')))
        ev.append((st - 1, st - 1, WaitLG(f'y{k}')))
        e = st + 31
        yk = {0: ['Y4'], 1: ['Y5'], 2: ['Y6']}.get(k)
        ev.append((e, e, [WaitLG(f'zw{k}')] + ([WaitVM(yk)] if yk else []) + [I('s_barrier')]))
        si = at[f'I{k}']; lo = max(e, at[f'I{k-2}'] + 15 if k >= 2 else 0)
        for f in range(8): ev.append((lo, max(lo, si - 4), I(f"ds_read_b128 {ar(ZB[k&1]+4*f,4)}, v12 offset:{8192*k+1024*f}", f'z{k}')))
        ev.append((max(lo, si - 1), max(lo, si - 1), WaitLG(f'z{k}')))
    ev.append((14, 14, [WaitVM(['Y2', 'Y3']), I('s_barrier')]))
    ev.sort(key=lambda x: (x[0], x[1]))
    s1 = []; s2 = []
    for n in order[:-1]:
        k = int(n[1]); st = at[n]
        if n[0] == 'F': s1 += [(st + 17, st + 30, x) for x in fv(k)]
        else:
            a, b, c = iv(k)
            s1 += [(st + 17, st + 31, x) for x in a]
            if st + 46 < N: s2 += [(st + 33, st + 37, x) for x in b] + [(st + 41, st + 46, x) for x in c]
    sa = [(x, x, stamp_i(n)) for n, x in dict(c0=0, c64=64, c128=128).items() if stamp_i(n)]
    P.add(weave(spine, [ev, s1, s2, sa], report=rep))
    a5, b5, c5 = iv(5); a6, b6, c6 = iv(6)
    P.add(b5); P.add(a6); P.add(c5); P.add(b6); P.add(c6)
    P.e("v_mov_b32 v14, 0\nv_mov_b32 v15, 1")
    stamp(P, 'inv')
    P.add(flag_set(WS_, sE4, 'T', 15, 14))
    if STAMPS and EXFIL is None:
        P.e(f"s_add_u32 {sBID}, s2, {NMAIN}"); stamp_out(P, len(SELA) - 1, sBID)
    P.e("s_endpgm")

def main(P, rep):
    sG1, sG2, sG3 = sI, sP, sK
    P.e(f"""
    s_sub_u32 {sBID}, s2, {NAUX}
    s_and_b32 {sP}, {sBID}, 7
    s_lshr_b32 {sK}, {sBID}, 3
    s_and_b32 {sA}, {sK}, 3
    s_lshr_b32 {sE}, {sK}, 2
    s_lshr_b32 {sI}, {sP}, 1
    s_lshl_b32 {sI}, {sI}, 2
    s_add_u32 {sI}, {sI}, {sA}
    s_and_b32 {sJ}, {sP}, 1
    s_mul_i32 {sJ}, {sJ}, 7
    s_add_u32 {sJ}, {sJ}, {sE}
    s_lshl_b32 {sT}, {sP}, 2
    s_add_u32 {sT}, {sT}, {sA}
    s_lshl_b32 {sN2}, {sI}, 2
    s_add_u32 {sN2}, {sN2}, {sW}
    s_lshl_b32 {sW4K}, {sW}, 12
    s_mov_b32 {sONES}, 0x3f803f80
    s_and_b32 {sA}, {sP}, 6
    s_add_u32 {sA}, {sA}, {sE}
    s_lshl_b32 {sA}, {sA}, 7
    """)
    for i in range(7):
        if i: P.e(f"s_add_u32 {sA}, {ROT[i-1]}, 128")
        P.e(f"s_sub_u32 {sB}, {sA}, 896\ns_cmp_ge_u32 {sA}, 896\ns_cselect_b32 {ROT[i]}, {sB}, {sA}")
    P.e(f"""
    v_xor_b32 v26, v24, v25
    v_mul_u32_u24 v2, 57344, v23
    v_lshl_add_u32 v2, v26, 4, v2
    v_xor_b32 v3, 64, v2
    s_mul_i32 {sE1}, {sN2}, 896
    """)
    wset = lines(f"""
    s_lshl_b32 {sF3}, {sBID}, 2
    s_add_u32 {sF3}, {sF3}, {sW}
    s_mul_i32 {sF4}, {sF3}, 9363
    s_lshr_b32 {sF4}, {sF4}, 16
    s_mul_i32 {sA}, {sF4}, 7
    s_sub_u32 {sF3}, {sF3}, {sA}
    s_mul_i32 {sF1}, {sF4}, {16*896}
    s_lshl_b32 {sA}, {sF3}, 7
    s_add_u32 {sF1}, {sF1}, {sA}
    s_lshr_b32 {sA}, {sF4}, 3
    s_lshl_b32 {sA}, {sA}, 14
    s_and_b32 {sB}, {sF4}, 1
    s_lshl_b32 {sB}, {sB}, 13
    s_add_u32 {sA}, {sA}, {sB}
    s_bfe_u32 {sB}, {sF4}, 0x20001
    s_lshl_b32 {sB}, {sB}, 11
    s_add_u32 {sA}, {sA}, {sB}
    s_mul_i32 {sB}, {sF3}, {14*16384}
    s_add_u32 {sA}, {sA}, {sB}
    s_add_u32 {sF2}, {sA}, {W2F}
    s_lshl_b32 {sA}, {sF3}, 11
    s_lshl_b32 {sB}, {sF4}, 4
    s_add_u32 {sA}, {sA}, {sB}
    s_add_u32 {sF3}, {sA}, {WF}
    v_lshrrev_b32 v17, 3, v0
    v_mul_u32_u24 v18, 896, v17
    v_bfe_u32 v17, v0, 4, 1
    v_lshlrev_b32 v17, 2, v17
    v_and_b32 v19, 7, v0
    v_xor_b32 v17, v17, v19
    v_lshl_add_u32 v18, v17, 4, v18
    """)
    wset.append([f"s_cmp_lt_u32 {sF4}, 112", f"s_cselect_b32 {sF2}, {sF2}, {WS_SIZE}", f"s_cselect_b32 {sF3}, {sF3}, {WS_SIZE}"])
    wdma = dma(W2_, 'v18', sF1, (sW4K, 9 * SLOT), 0, 'wt') + [I(f"s_add_u32 {sF1}, {sF1}, {8*896-1024}")] + dma(W2_, 'v18', sF1, None, 1024, 'wt')
    wtr = lines(f"""
    v_bfe_u32 v21, v0, 5, 1
    v_lshlrev_b32 v21, 9, v21
    v_sub_u32 v21, v15, v21
    v_add_u32 v21, {9*SLOT-0x20000}, v21
    v_add_u32 v21, {sW4K}, v21
    ds_read_b64_tr_b16 v[240:241], v21
    ds_read_b64_tr_b16 v[242:243], v21 offset:1024
    v_xor_b32 v21, 64, v21
    ds_read_b64_tr_b16 v[244:245], v21
    ds_read_b64_tr_b16 v[246:247], v21 offset:1024
    """)
    wst = [I(f"buffer_store_dwordx4 {vr(240+4*dt,4)}, {L16}, {WS_}, {sF2} offen offset:{1024*dt} sc1", 'wj') for dt in range(2)]
    def xdma(c):
        o = []
        for rb in range(4):
            pre = [I(f"s_add_u32 {sC}, {sE1}, {ROT[c]}")] if rb == 0 else [I(f"s_add_u32 {sC}, {sC}, {8*57344-1024}")]
            o.append(pre + dma(X_, 'v3' if rb & 1 else 'v2', sC, (sW4K, c * SLOT) if rb == 0 else None, rb * 1024, f'x{c}'))
        return o
    BT, IDM = 200, 216
    setup = lines(f"""
    v_mul_u32_u24 v4, 3584, v23
    v_and_b32 v25, 1, v25
    v_lshlrev_b32 v25, 2, v25
    v_xor_b32 v26, v24, v25
    v_lshl_add_u32 v4, v26, 4, v4
    v_add_u32 v5, {8*3584-1024}, v4
    s_mul_i32 {sA}, {sW}, {16*3584}
    s_lshl_b32 {sB}, {sJ}, 8
    s_add_u32 {sA}, {sA}, {sB}
    """)
    for i in range(7): setup += [f"s_mul_i32 {DBO[i]}, {ROT[i]}, 1792", f"s_add_u32 {DBO[i]}, {DBO[i]}, {sA}"]
    setup += lines(f"""
    v_lshrrev_b32 v26, 5, v0
    v_add_u32 v10, {7*SLOT}, {L16}
    s_lshl_b32 {sA}, {sW}, 10
    v_add_u32 v27, {sA}, v10
    v_and_b32 v23, 15, v0
    s_lshl_b32 {sA}, {sJ}, 4
    s_add_u32 {sA}, {sA}, 1
    v_add_u32 v23, {sA}, v23
    v_cvt_f32_u32 v23, v23
    v_mul_f32 v23, {f32bits(1/448):#x}, v23
    v_bfe_u32 v24, v0, 4, 1
    v_cvt_f32_u32 v24, v24
    v_mul_f32 v24, 0x3e800000, v24
    s_lshl_b32 {sA}, {sW}, 4
    v_lshl_add_u32 v25, v26, 3, {sA}
    """)
    for u in range(7):
        t = 144 + 16 * (u & 1)
        setup += [f"s_lshr_b32 {sA}, {ROT[u]}, 1", f"v_add_u32 v{t}, {sA}, v25", f"v_cvt_f32_u32 v{t}, v{t}", f"v_fma_f32 v{t}, v{t}, v23, v24"]
        setup += [f"v_fmamk_f32 v{t+e}, v23, {f32bits(float(e)):#x}, v{t}" for e in range(1, 8)]
        setup += [f"v_cos_f32 v{t+e}, v{t+e}" for e in range(8)]
        setup += [f"v_cvt_pk_bf16_f32 v{t+8+z}, v{t+2*z}, v{t+2*z+1}" for z in range(4)]
        setup += [f"ds_write_b128 v27, {vr(t+8,4)} offset:{4096*u}"]
    setup += lines(f"""
    v_and_b32 v23, 31, v0
    v_lshlrev_b32 v24, 7, v23
    v_add_u32 v24, {sW4K}, v24
    v_bfe_u32 v25, v0, 1, 3
    v_xor_b32 v25, v25, v26
    v_lshl_add_u32 v6, v25, 4, v24
    v_xor_b32 v7, 32, v6
    v_xor_b32 v8, 64, v6
    v_xor_b32 v9, 0x60, v6
    v_mov_b32 v28, 0
    v_mov_b32 v29, 0
    v_mov_b32 v30, 0
    v_mov_b32 v31, 0
    """)
    setup2 = lines(f"""
    v_bfe_u32 v24, v0, 2, 2
    v_lshlrev_b32 v23, 7, v24
    v_bfe_u32 v25, v0, 4, 1
    v_lshl_add_u32 v23, v25, 5, v23
    v_and_b32 v25, 3, v0
    v_lshl_add_u32 v23, v25, 3, v23
    v_bfe_u32 v24, v0, 3, 1
    v_lshl_add_u32 v11, v24, 6, v23
    v_lshl_add_u32 v11, v26, 10, v11
    v_xor_b32 v12, 64, v11
    v_add_u32 v13, 0x10000, v11
    v_add_u32 v14, 0x10000, v12
    v_add_u32 v15, 0x20000, v11
    v_add_u32 v16, 0x20000, v12
    s_mul_i32 {sH0}, {sN2}, {112*1024}
    s_lshl_b32 {sA}, {sJ}, 13
    s_add_u32 {sH0}, {sH0}, {sA}
    s_add_u32 {sH0}, {sH0}, {HBUF}
    s_add_u32 {sH1}, {sH0}, 4096
    v_bfe_u32 v23, v0, 2, 1
    v_cmp_eq_u32 vcc, v23, v26
    v_bfe_u32 v23, v0, 3, 1
    v_and_b32 v24, 3, v0
    v_lshl_add_u32 v23, v23, 2, v24
    v_cndmask_b32 v23, 8, v23, vcc
    v_and_b32 v24, 1, v0
    v_lshlrev_b32 v24, 4, v24
    v_mov_b32 v25, 0x3f80
    v_lshlrev_b32 v24, v24, v25
    v_lshrrev_b32 v23, 1, v23
    v_bfe_u32 v25, v0, 4, 1
    v_lshl_add_u32 v23, v25, 3, v23
    """)
    for z in range(8):
        setup2 += [f"v_cmp_eq_u32 vcc, {z if z < 4 else z + 4}, v23", f"v_cndmask_b32 v25, 0, v24, vcc", f"v_accvgpr_write_b32 a{IDM+z}, v25"]
    setup2 += lines(f"""
    v_bfe_u32 v23, v0, 1, 4
    v_lshlrev_b32 v22, 13, v23
    v_lshl_add_u32 v22, v26, 5, v22
    v_and_b32 v27, 1, v0
    v_lshl_add_u32 v22, v27, 4, v22
    v_sub_u32 v25, 32, v23
    v_cmp_eq_u32 vcc, 0, v23
    v_lshlrev_b32 v24, 8, v26
    v_add_u32 v24, {sN2}, v24
    v_cndmask_b32 v25, v25, 16, vcc
    v_cmp_eq_u32 vcc, 0, v27
    v_cvt_f32_u32 v24, v24
    v_mul_f32 v24, {f32bits(1/2048):#x}, v24
    v_cndmask_b32 v23, v25, v23, vcc
    v_cvt_f32_u32 v23, v23
    v_mul_f32 v24, v23, v24
    v_mul_f32 v23, {f32bits(1/32):#x}, v23
    """)
    for ss in range(2):
        for z in range(4):
            n1 = [16 * ss + 8 * (e >> 2) + (e & 3) for e in (2 * z, 2 * z + 1)]
            setup2 += [f"v_fmamk_f32 v144, v23, {f32bits(float(n1[0])):#x}, v24", f"v_fmamk_f32 v145, v23, {f32bits(float(n1[1])):#x}, v24",
                       "v_cos_f32 v146, v144", "v_cos_f32 v147, v145", "v_sin_f32 v144, v144", "v_sin_f32 v145, v145",
                       "v_cvt_pk_bf16_f32 v146, v146, v147", "v_cvt_pk_bf16_f32 v144, v144, v145",
                       f"v_accvgpr_write_b32 a{BT+4*ss+z}, v146", f"v_accvgpr_write_b32 a{BT+8+4*ss+z}, v144"]
    allset = setup + wset + setup2
    NPRE = OPT.get('NPRE', 170)
    P.add(allset[:NPRE])
    P.e("s_waitcnt lgkmcnt(0)")
    stamp(P, 'karg')
    NX0 = 3
    P.add(xdma(0) + xdma(1)); P.add(allset[NPRE:]); P.add(wdma); P.add(xdma(2))
    stamp(P, 'iss')
    DA = ACC[5]
    later = sum([xdma(c) for c in range(NX0, 7)], []) + sum([db_dma(0, c) for c in range(NX0)], [])
    def rd(c):
        o = []
        for q in range(4):
            o.append(I(f"ds_read_b128 {vr(XF+16*c+4*q, 4)}, v{6+q} offset:{(c & 3) * SLOT}", f"xr{c}"))
            o.append(I(f"ds_read_b128 {ar(ABUF+16*(c&1)+4*q, 4)}, v10 offset:{(4*c+q)*1024}", f"xr{c}"))
        return o
    ONE, ZERO = 2, 3
    zld = f"buffer_load_dword v17, v18, {DBG_}, 0 offen offset:128 sc1"
    zpre = ["v_and_b32 v18, 15, v0", "v_lshlrev_b32 v18, 2, v18", zld, f"v_mov_b32 v{ONE}, 1", f"v_mov_b32 v{ZERO}, 0"]
    P.e("s_waitcnt lgkmcnt(0)\ns_barrier"); P.waitvm('x0'); P.add(rd(0))
    for c in range(7):
        dots = []
        for r in range(16):
            x = XF + 16 * c + r
            dots += [f"v_dot2c_f32_bf16 v{28+(r&1)}, {sONES}, v{x}", f"v_dot2c_f32_bf16 v{30+(r&1)}, v{x}, v{x}"]
        P.waitlg(f"xr{c}")
        for q in range(4):
            s = 4 * c + q
            P.e(f"{M32} {vr(DA,16)}, {vr(XF+4*s,4)}, {ar(ABUF+16*(c&1)+4*q,4)}, {vr(DA,16) if s else 0}")
            if q in (0, 2): P.add(later[4 * c + q // 2])
        if c < 6:
            if c == 3: P.add([f"v_add_u32 v{6+q}, 0x10000, v{6+q}" for q in range(4)])
            P.waitvm(f'x{c+1}'); P.add(rd(c + 1))
        if c == 2: P.add(wtr)
        P.add(later[4 * c + 2]); P.add(dots[:16])
        if c == 3: pass
        P.add(later[4 * c + 3]); P.add(dots[16:])
        if c == 4: P.add(zpre)
    stamp(P, 'arr')
    P.add(wst)
    CM = 240; IDT = ACC[4]
    P.e(f"""
    s_nop 2
    v_add_f32 v28, v28, v29
    v_add_f32 v30, v30, v31
    v_mov_b32 v29, v28
    v_mov_b32 v31, v30
    v_permlane32_swap_b32 v28, v29
    v_permlane32_swap_b32 v30, v31
    v_add_f32 v28, v28, v29
    v_add_f32 v30, v30, v31
    v_mul_f32 v19, {f32bits(-1/448):#x}, v28
    v_mul_f32 v30, {f32bits(1/448):#x}, v30
    """)
    for r in range(16): P.e(f"v_mov_b32 v{CM+r}, v19")
    def ident(pp, d): return [f"{M32} {vr(d,16)}, {ar(IDM,4)}, {vr(XF+8*pp,4)}, {vr(CM,16)}", f"{M32} {vr(d,16)}, {ar(IDM+4,4)}, {vr(XF+8*pp+4,4)}, {vr(d,16)}"]
    def identcvt(pp, d): return [f"v_cvt_pk_bf16_f32 v{XF+8*pp+z}, v{d+2*z}, v{d+2*z+1}" for z in range(8)]
    P.add(ident(0, ACC[0])); P.add(ident(1, ACC[1]))
    P.e(f"""
    v_fma_f32 v30, -v19, v19, v30
    v_max_f32 v30, 0, v30
    v_add_f32 v21, {f32bits(1e-5):#x}, v30
    v_rsq_f32 v29, v21
    v_and_b32 v23, 31, v0
    s_lshl_b32 {sA}, {sW}, 7
    s_add_u32 {sA}, {sA}, {SCR}
    v_lshl_add_u32 v23, v23, 2, {sA}
    ds_write_b32 v23, v29
    v_mul_f32 v20, {f32bits(-math.log2(math.e)):#x}, v29
    v_lshl_add_u32 v19, v26, 4, {sA}
    s_waitcnt lgkmcnt(0)
    """)
    for q in range(4): P.e(f"ds_read_b128 {vr(ACC[4]+4*q,4)}, v19 offset:{32*q}")
    P.add(identcvt(0, ACC[0])); P.add(identcvt(1, ACC[1]))
    PK = 24
    for r in range(16): P.e(f"v_mul_f32 v{DA+r}, v{ACC[4]+r}, v{DA+r}")
    for z in range(8): P.e(f"v_cvt_pk_bf16_f32 v{PK+z}, v{DA+2*z}, v{DA+2*z+1}")
    Pp, Q = ACC[4], ACC[5]
    P.waitvm('db0_0'); P.e("s_barrier")
    tiles = ((0, 0, ACC[0]), (1, 0, ACC[2]), (0, 1, ACC[1]), (1, 1, ACC[3]))
    for t, (m, fb, acc) in enumerate(tiles): P.add(db_tr(0, 0, m, fb, ABUF + 4 * t))
    for ss in range(2):
        P.e(f"{M32} {vr(Pp,16)}, {vr(PK+4*ss,4)}, {ar(BT+4*ss,4)}, {vr(Pp,16) if ss else 0}")
        P.e(f"{M32} {vr(Q,16)}, {vr(PK+4*ss,4)}, {ar(BT+8+4*ss,4)}, {vr(Q,16) if ss else 0}")
    stamp(P, 'p0')
    spine = []; ix = {}
    for s in range(28):
        for t, (m, fb, acc) in enumerate(tiles):
            ix[s, t] = len(spine)
            spine.append(f"{M32} {vr(acc,16)}, {ar(ABUF+16*(s&1)+4*t,4)}, {vr(XF+4*s,4)}, {vr(acc,16) if s else 0}")
            if s % 2 == 0 and t == 1 and 2 <= s < 26:
                pp = s // 2 + 1
                ix['id', pp] = len(spine); spine += ident(pp, IDT)
    n0 = len(spine)
    def setof(k): return ABUF + 16 * ((k >> 1) & 1) + 8 * (k & 1)
    for k in range(56):
        half, s = divmod(k, 28)
        accs = (ACC[4], ACC[5]) if half == 0 else (ACC[0], ACC[2])
        for m in range(2):
            ix['p', k, m] = len(spine)
            spine.append(f"{M32} {vr(accs[m],16)}, {ar(setof(k)+4*m,4)}, {vr(XF+4*s,4)}, {vr(accs[m],16) if s else 0}")
    n1 = len(spine); p1b = ix['p', 28, 0]
    HB, HD = 32, 12
    GA = [ACC[1], ACC[3], ACC[4], ACC[5]]
    D1, SA, XU, XR, DPF = 128, ACC[0], ACC[2], 240, 248
    NI1 = OPT['NI1']
    def idft(z): return f"{M32} {vr(D1,16)}, {ar(112+4*z,4)}, {ar(4*z,4)}, {vr(D1,16) if z else 0}"
    assert NI1 <= 14
    NP = OPT.get('NP', 16)
    spine += [None] * NP
    for u in range(28):
        if u == 21:
            for z in range(NI1): ix['i', z] = len(spine); spine.append(idft(z))
        for lam in range(4):
            th, dt = lam >> 1, lam & 1
            ix['g', u, lam] = len(spine)
            spine.append(f"{M32} {vr(GA[lam],16)}, {ar(8*u+4*dt,4)}, {vr(HB+8*(u%HD)+4*th,4)}, {vr(GA[lam],16) if u else 0}")
    n2 = len(spine)
    for z in range(NI1, 28): ix['i', z] = len(spine); spine.append(idft(z))
    last = len(spine) - 1
    gq = lambda u: ix['g', u, 0]
    trs = []; bar = {}
    def macro(start, nxt, reads, tag, pre=None):
        if pre: trs.append((start, start, pre))
        for x in reads: trs.append((start, max(start, nxt - 3), x))
        trs.append((nxt - 1, nxt - 1, WaitLG(tag)))
    B0 = {4: ['db0_1', 'db0_2'], 12: ['db0_3', 'db0_4'], 20: ['db0_5', 'db0_6']}
    for s in range(1, 28):
        reads = sum([db_tr(0, s, m, fb, ABUF + 16 * (s & 1) + 4 * t, f"r{s}") for t, (m, fb, acc) in enumerate(tiles)], [])
        pre = None; st = ix[s - 1, 0] - 1
        if s in B0: pre = [WaitVM(B0[s]), I('s_barrier')]; bar[s] = st
        macro(st, ix[s, 0], reads, f"r{s}", pre)
    for mc in range(28):
        reads = []
        for k in (2 * mc, 2 * mc + 1):
            half, s = divmod(k, 28)
            for m in range(2): reads += db_tr(1, s, m, half, setof(k) + 4 * m, f"p{mc}")
        st = (ix[27, 0] if mc == 0 else ix['p', 2 * mc - 2, 0]) - 1
        pre = None
        if mc == 0: pre = [WaitVM([f'db1_{c}' for c in range(4)]), I('s_barrier')]; bar['D'] = st
        if mc == 8: pre = [WaitVM([f'db1_{c}' for c in range(7)]), I('s_barrier')]; bar['E'] = st
        if mc == 23: pre = [I('s_barrier')]; bar['F'] = st
        macro(st, ix['p', 2 * mc, 0], reads, f"p{mc}", pre)
    idc = []
    for pp in range(2, 14):
        for x in identcvt(pp, IDT): idc.append((ix['id', pp] + 3, ix[2 * pp, 0] - 2, x))
    stb = []
    lo, hi = 0, ix['id', 2] - 1
    for r in range(8):
        stb.append((lo, hi, f"v_add_f32 v{Pp+r}, v{Pp+r}, v{Q+8+r}"))
        stb.append((lo, hi, f"v_sub_f32 v{Pp+8+r}, v{Pp+8+r}, v{Q+r}"))
    for sub in range(2):
        o = PK + 4 * sub
        for z in range(2):
            stb.append((lo, hi, f"v_cvt_pk_bf16_f32 v{o+z}, v{Pp+4*sub+2*z}, v{Pp+4*sub+2*z+1}"))
            stb.append((lo, hi, f"v_cvt_pk_bf16_f32 v{o+2+z}, v{Pp+8+4*sub+2*z}, v{Pp+8+4*sub+2*z+1}"))
    for x in [f"s_lshl_b32 {sE3}, {sJ}, 17", f"s_lshl_b32 {sE4}, {sN2}, 7", f"s_add_u32 {sE3}, {sE3}, {sE4}", f"s_add_u32 {sE3}, {sE3}, {YBUF}"]: stb.append((lo, hi, x))
    for sub in range(2):
        o = PK + 4 * sub
        stb.append((lo, hi, f"v_permlane32_swap_b32 v{o}, v{o+2}"))
        stb.append((lo, hi, f"v_permlane32_swap_b32 v{o+1}, v{o+3}"))
    yst = [I(f"buffer_store_dwordx4 {vr(PK+4*sub,4)}, v22, {WS_}, {sE3} offen offset:{64*sub} sc1", 'Y') for sub in range(2)]
    YS = hi + 1
    IMG, TLD, IFL = 0, 49152, 106496
    VH, VW, VHF, VXO, VIF, VT0, VT1, VIM, VXD, VXR, VIW = 8, 6, 17, 22, 10, 23, 19, 28, 24, 25, 26
    m1 = lines(f"""
    s_lshl_b32 {sE1}, {sJ}, 10
    s_lshl_b32 {sA}, {sN2}, 4
    s_add_u32 {sE1}, {sE1}, {sA}
    s_add_u32 {sE1}, {sE1}, {YF}
    """)
    m2 = lines(f"""
    s_lshl_b32 {sF1}, {sN2}, 8
    s_lshl_b32 {sA}, {sJ}, 4
    s_add_u32 {sF1}, {sF1}, {sA}
    s_add_u32 {sF1}, {sF1}, {HF[0]}
    s_and_b32 {sA}, {sW}, 1
    s_lshl_b32 {sB}, {sA}, 10
    v_add_u32 v{VW}, {sB}, {L16}
    v_xor_b32 v{VW+1}, 0x400, v{VW}
    s_lshl_b32 {sE2}, {sA}, 13
    s_lshr_b32 {sB}, {sW}, 1
    s_lshl_b32 {sD}, {sB}, 14
    s_add_u32 {sE2}, {sE2}, {sD}
    s_mul_i32 {sD}, {sE}, {14*16384}
    s_add_u32 {sE2}, {sE2}, {sD}
    s_add_u32 {sE2}, {sE2}, {W2F}
    s_mul_i32 {sD}, {sB}, {112*1024}
    v_add_u32 v{VH}, {sD}, {L16}
    s_sub_u32 {sD}, {112*1024}, {sD}
    v_add_u32 v{VH+1}, {sD}, {L16}
    s_lshl_b32 {sE4}, {sB}, 3
    s_add_u32 {sE4}, {sE4}, {sA}
    s_lshl_b32 {sE4}, {sE4}, 10
    s_mul_i32 {sD}, {sT}, {2*112*1024}
    s_add_u32 {sE4}, {sE4}, {sD}
    s_add_u32 {sE4}, {sE4}, {HBUF}
    v_and_b32 v{VHF}, 7, v0
    v_min_u32 v{VHF}, 6, v{VHF}
    v_lshlrev_b32 v{VHF}, 5, v{VHF}
    v_bfe_u32 v27, v0, 3, 1
    v_lshl_add_u32 v{VHF}, v27, 8, v{VHF}
    s_lshl_b32 {sF2}, {sT}, 9
    s_lshl_b32 {sD}, {sB}, 4
    s_add_u32 {sF2}, {sF2}, {sD}
    s_add_u32 {sF2}, {sF2}, {HF[0]}
    s_mul_i32 {sF4}, {sW}, 14336
    s_mul_i32 {sF3}, {sT}, 57344
    s_add_u32 {sF3}, {sF3}, {sF4}
    s_add_u32 {sF3}, {sF3}, {TBUF}
    s_lshr_b32 {sG1}, {sT}, 3
    s_lshl_b32 {sG1}, {sG1}, 9
    s_lshl_b32 {sD}, {sA}, 8
    s_add_u32 {sG1}, {sG1}, {sD}
    s_add_u32 {sG1}, {sG1}, {TF}
    s_lshl_b32 {sG2}, {sT}, 1
    s_add_u32 {sG2}, {sG2}, {sB}
    s_mul_i32 {sG2}, {sG2}, 896
    s_lshl_b32 {sD}, {sE}, 7
    s_add_u32 {sG2}, {sG2}, {sD}
    s_mul_i32 {sG3}, {sA}, {16*57344}
    s_add_u32 {sG3}, {sG3}, {sG2}
    s_lshl_b32 {sD}, {sA}, 6
    s_add_u32 {sG2}, {sG2}, {sD}
    v_lshrrev_b32 v27, 5, v0
    v_and_b32 v{VXO}, 31, v0
    v_lshlrev_b32 v{VXR}, 7, v{VXO}
    v_mul_u32_u24 v{VXO}, 57344, v{VXO}
    v_lshl_add_u32 v{VXO}, v27, 4, v{VXO}
    s_lshl_b32 {sD}, {sB}, 12
    v_add_u32 v{VXR}, {sD}, v{VXR}
    s_lshl_b32 {sD}, {sA}, 2
    v_xor_b32 v{VXD}, {sD}, v27
    v_bfe_u32 v{VT0}, v0, 1, 3
    v_xor_b32 v{VXD}, v{VXD}, v{VT0}
    v_lshl_add_u32 v{VXR}, v{VXD}, 4, v{VXR}
    v_lshrrev_b32 v{VXD}, 4, v0
    v_and_b32 v{VT0}, 7, v0
    v_xor_b32 v{VT0}, v{VT0}, v{VXD}
    v_lshrrev_b32 v{VXD}, 3, v0
    v_mul_u32_u24 v{VXD}, 57344, v{VXD}
    v_lshl_add_u32 v{VXD}, v{VT0}, 4, v{VXD}
    s_mul_i32 {sD}, {sA}, 28672
    s_add_u32 {sD}, {sD}, {IFL}
    v_add_u32 v{VIF}, {sD}, {L16}
    s_mul_i32 {sD}, {sB}, 14336
    v_add_u32 v{VIW}, {sD}, v{VIF}
    v_bfe_u32 v{VT1}, v0, 1, 4
    v_lshlrev_b32 v{VT0}, 7, v{VT1}
    v_bfe_u32 v{VT1}, v0, 2, 2
    v_xor_b32 v{VT1}, v{VT1}, v27
    v_lshl_add_u32 v{VT0}, v{VT1}, 5, v{VT0}
    v_and_b32 v{VT1}, 1, v0
    v_lshl_add_u32 v{VT0}, v{VT1}, 4, v{VT0}
    s_mul_i32 {sD}, {sB}, 28672
    s_add_u32 {sD}, {sD}, {TLD}
    v_add_u32 v{VT0}, {sD}, v{VT0}
    v_xor_b32 v{VT1}, 64, v{VT0}
    """)
    for lam in range(1, 4):
        m2 += [f"s_xor_b32 {sD}, {sW}, {lam}", f"s_mul_i32 {sD}, {sD}, 12288", f"s_add_u32 {sD}, {sD}, {IMG+(lam-1)*4096}", f"v_add_u32 v{VIM+lam-1}, {sD}, {L16}"]
    m2 += [f"s_mul_i32 {sD}, {sW}, 12288", f"s_add_u32 {sD}, {sD}, {IMG}", f"v_add_u32 v{VIM+3}, {sD}, {L16}"]
    YG = OPT.get('YG', YS + 26)
    MS = OPT.get('MS', 72)
    m2a = [x for x in m2[:15]]; m2b = [x.replace('v27', 'v31') for x in m2[15:]]
    m1b = lines(f"""
    v_and_b32 v18, 7, v0
    v_min_u32 v18, 6, v18
    v_lshlrev_b32 v18, 8, v18
    v_bfe_u32 v27, v0, 3, 2
    v_lshl_add_u32 v18, v27, 5, v18
    s_lshr_b32 {sE3}, {sW}, 1
    s_lshl_b32 {sE3}, {sE3}, 3
    s_and_b32 {sA}, {sW}, 1
    s_add_u32 {sE3}, {sE3}, {sA}
    s_lshl_b32 {sE3}, {sE3}, 4
    s_lshl_b32 {sA}, {sE}, 11
    s_add_u32 {sE3}, {sE3}, {sA}
    s_add_u32 {sE3}, {sE3}, {WF}
    """)
    misc = [(YS + 2, YS + 12, x) for x in m1] + [(YS + 13, YG, x) for x in m1b] + [(YG + 2, MS, x) for x in m2a]
    SP = OPT.get('SP', 2.6)
    vm = []; cur = [0.0]
    def put(groups, lo=0, step=None):
        for grp in groups:
            g = max(cur[0], lo); vm.append((int(g), int(g) + 1, grp)); cur[0] = g + (SP if step is None else step)
    wld = f"buffer_load_dword v27, v18, {WS_}, {sE3} offen sc1"
    ZG = OPT.get('ZG', YS + 6)
    fixed = [(YS, YS, yst), (ZG, ZG, poll_check('z', [zld], [17]) + flag_set(WS_, sF3, 'wj', ONE, ZERO)), (YG, YG + 1, flag_set(WS_, sE1, 'Y', ONE, ZERO))]
    put(sum([db_dma(0, c) for c in range(NX0, 7)], []) + db_dma(1, 0) + db_dma(1, 1))
    put(db_dma(1, 2) + db_dma(1, 3), bar[4] + 1)
    WG_ = OPT.get('WG', 70)
    fixed.append((WG_, WG_, wld))
    put(db_dma(1, 4) + db_dma(1, 5), bar[12] + 1)
    ofs = []
    for i in range(7): ofs += [f"s_lshl_b32 {ROT[i]}, {ROT[i]}, 8", f"s_add_u32 {ROT[i]}, {ROT[i]}, {sE2}"]
    misc += [(MS + 1, WG_ + 16, x) for x in ofs]
    put([poll_check('w', [wld], [27]) + ["v_and_b32 v18, 15, v0", "v_lshlrev_b32 v18, 4, v18"]], WG_ + 18, step=1)
    def w2load(fb):
        o = []
        for i in range(7):
            for dt in range(2):
                pre = [I(f"v_add_u32 v{VW}, 0x1000, v{VW}"), I(f"v_add_u32 v{VW+1}, 0x1000, v{VW+1}")] if (fb, i, dt) == (2, 0, 0) else []
                o.append(pre + [I(f"buffer_load_dwordx4 {ar(8*(7*fb+i)+4*dt,4)}, v{VW+dt}, {WS_}, {ROT[i]} offen offset:{2048*(fb&1)} sc1", 'w2')])
        return o
    hfl = f"buffer_load_dword v27, v{VHF}, {WS_}, {sF2} offen sc1"
    seq = []
    def hblock(fb, lo, step):
        o = [(lo, poll_check(f'h{fb}', [hfl], [27]) + [I(f"s_add_u32 {sF2}, {sF2}, 0x4000")] +
              ([I(f"v_add_u32 v{VH}, 0x1000, v{VH}"), I(f"v_add_u32 v{VH+1}, 0x1000, v{VH+1}")] if fb == 2 else []), 0)]
        for i in range(7):
            u = 7 * fb + i; b = HB + 8 * (u % HD)
            free = ix['g', u - HD, 3] if u >= HD else ix['p', 28 + 2 * u + 1, 1]
            o += [(free, I(f"buffer_load_dwordx4 {vr(b+4*th,4)}, v{VH+th}, {WS_}, {DBO[i]} offen offset:{2048*(fb&1)} sc1", f'hl{fb}_{i}'), step) for th in range(2)]
        return o
    PA = OPT.get('PA', {1: 8, 3: 8, 5: 4, 6: 8})
    HC0 = OPT.get('HC0', n0 + 112)
    SP2 = OPT.get('SP2', 1.25)
    wall = w2load(0) + w2load(1) + w2load(2) + w2load(3)
    k = 0
    while cur[0] < bar[20] + 1: put([wall[k]]); k += 1
    put(db_dma(1, 6))
    g6 = int(cur[0])
    misc += [(WG_ + 17, g6 + 10, x) for x in m2b]
    ofs = [f"s_lshr_b32 {sD}, {sE2}, 1", f"s_sub_u32 {sE4}, {sE4}, {sD}"]
    for i in range(7): ofs += [f"s_lshr_b32 {DBO[i]}, {ROT[i]}, 1", f"s_add_u32 {DBO[i]}, {DBO[i]}, {sE4}"]
    misc += [(g6 + 11, g6 + 30, x) for x in ofs]
    while cur[0] < HC0 and k < 56: put([wall[k]], n0 if k >= 50 else 0); k += 1
    assert HC0 - 19 > g6 + 30
    fixed.append((HC0 - 19, HC0 - 19, hfl))
    print("w2 loads issued before h0:", k, file=sys.stderr)
    xd = [[I(f"s_add_u32 {sC}, {sG3}, {8*57344*u}"), I(f"s_lshl_b32 {sD}, {sW}, 11"), I(f"s_add_u32 m0, {sD}, {IMG+1024*u}")] + ([I(f"v_xor_b32 v{VXD}, 64, v{VXD}")] if u else []) +
          [I(f"buffer_load_dwordx4 v{VXD}, {X_}, {sC} offen lds", 'xr')] for u in range(2)]
    xd += [[f"s_mov_b32 {sC}, {DP}", f"buffer_load_dwordx4 {vr(DPF,4)}, {L16}, {TAB_}, {sC} offen"], [f"buffer_load_dwordx4 {vr(DPF+4,4)}, {L16}, {TAB_}, {sC} offen offset:1024"]]
    tfl = f"buffer_load_dword v5, v18, {WS_}, {sG1} offen sc1"
    tb = [(0, poll_check('t', [tfl], [5]), 0)] + [(0, [I(f"s_add_u32 {sC}, {sF3}, {u*1024}")] + dma(WS_, L16, sC, (sF4, TLD + u * 1024), 0, 'Tl', 'sc1'), SP2) for u in range(14)]
    E = OPT.get('E', (n0 + 22, n0 + 52, p1b + 30, n1 + 18))
    FD = OPT.get('FD', 22)
    def fset(fb): return flag_set(WS_, sF1, f'h{fb}', ONE, ZERO) + [I(f"s_add_u32 {sF1}, {sF1}, 0x4000")]
    k2 = max(k, 42)
    blocks = [hblock(0, HC0, OPT.get('SP1', 1.25)), hblock(1, 0, SP2), [(0, x, SP2) for x in wall[k:k2]] + [(n1 + 4, [I('s_barrier')] + xd[0], SP2)] + [(0, x, SP2) for x in xd[1:]],
              hblock(2, 0, SP2), [(n0, x, SP2) for x in wall[k2:]], hblock(3, 0, SP2), tb]
    polls = {1: hfl, 3: hfl, 5: hfl, 6: tfl}
    for bi, blk in enumerate(blocks):
        if bi in polls: seq.insert(len(seq) - PA[bi], (0, polls[bi], 0))
        seq += blk
    f3 = None; marks = {}
    for lo, item, step in seq:
        put([item], lo, step)
        if f3 is None and cur[0] > E[3] + OPT.get('FD3', 12): put([fset(3)], step=0); f3 = cur[0]
        t = getattr(item, 'tag', None) or (getattr(item[-1], 'tag', None) if isinstance(item, list) else None)
        if t: marks[t] = int(cur[0])
    tdone = int(cur[0])
    for u in range(28): assert marks[f'hl{u//7}_{u%7}'] + 1 < gq(u), ('h load after use', u, marks[f'hl{u//7}_{u%7}'], gq(u))
    assert marks.get('w2', 0) + 1 < gq(21) and tdone + 1 < n2
    marks = {k: v for k, v in marks.items() if not k.startswith('hl') or k.endswith('_6')}
    print("load ends", marks, "needed", [gq(7 * fb) for fb in range(4)], "idft", ix['i', 0], "f3", f3, file=sys.stderr)
    epi = []
    for x in G.epilogue(ACC[0], ACC[2], 0): epi.append((n0 + 1, E[0], x))
    for x in G.epilogue(ACC[1], ACC[3], 1): epi.append((n0 + 1, E[1], x))
    for x in G.epilogue(ACC[4], ACC[5], 2): epi.append((p1b + 2, E[2], x))
    for x in G.epilogue(ACC[0], ACC[2], 3): epi.append((n1 + 2, E[3], x))
    assert E[0] < p1b - 1 and E[1] < n1 - 1 and E[2] < n1 - 1
    for fb in range(3): fixed.append((E[fb] + FD, E[fb] + FD + 1, fset(fb)))
    assert f3 > E[2] + FD + 1
    vm = sorted(vm + fixed, key=lambda x: x[0])
    gen = lines(f"""
    v_and_b32 v11, 31, v0
    s_lshl_b32 {sA}, {sE}, 6
    s_and_b32 {sB}, {sW}, 1
    s_lshl_b32 {sB}, {sB}, 5
    s_add_u32 {sA}, {sA}, {sB}
    v_add_u32 v11, {sA}, v11
    v_cvt_f32_u32 v11, v11
    v_mul_f32 v11, {f32bits(1/448):#x}, v11
    v_lshrrev_b32 v12, 5, v0
    s_lshr_b32 {sA}, {sW}, 1
    v_and_b32 v13, {sA}, v12
    v_cvt_f32_u32 v13, v13
    v_fma_f32 v13, v13, -0.5, 1.0
    s_mul_i32 {sA}, {sA}, 112
    s_add_u32 {sA}, {sA}, 1
    v_lshl_add_u32 v12, v12, 2, {sA}
    v_cvt_f32_u32 v12, v12
    v_mul_f32 v12, v12, v11
    """)
    for zl in range(14):
        t = D1 + 8 * (zl & 1)
        gen += [f"v_fmamk_f32 v{t+4+r}, v11, {f32bits(float(8*zl+r)):#x}, v12" for r in range(4)]
        gen += [f"v_cos_f32 v{t+r}, v{t+4+r}" for r in range(4)] + [f"v_sin_f32 v{t+4+r}, v{t+4+r}" for r in range(4)]
        if zl == 13: gen += [f"v_mul_f32 v{t+3}, v13, v{t+3}"]
        gen += [f"v_cvt_pk_bf16_f32 v{t}, v{t}, v{t+1}", f"v_cvt_pk_bf16_f32 v{t+1}, v{t+2}, v{t+3}",
                f"v_cvt_pk_bf16_f32 v{t+2}, -v{t+4}, -v{t+5}", f"v_cvt_pk_bf16_f32 v{t+3}, -v{t+6}, -v{t+7}",
                I(f"ds_write_b128 v{VIW}, {vr(t,4)} offset:{1024*zl}", 'ifw')]
    GE = n1 + OPT.get('GE', 84)
    gens = [(n1 + 1, GE, x) for x in gen]
    rd_ = [(GE + 1, GE + 1, [WaitLG('ifw'), WaitVM('xr'), I('s_barrier')])]
    for qq in range(2): rd_.append((GE + 1, GE + 4, ([f"v_xor_b32 v{VXR}, 32, v{VXR}"] if qq else []) + [f"ds_read_b128 {vr(XR+4*qq,4)}, v{VXR}"]))
    for z in range(28): rd_.append((max(GE + 1, ix['g', z >> 1, 3]), max(GE + 20, ix['g', z >> 1, 3]), I(f"ds_read_b128 {ar(4*z,4)}, v{VIF} offset:{1024*z}", 'ifr')))
    tb_ = max(GE + 21, min(ix['i', 0] - 5, tdone + OPT.get('TL', 16)))
    rd_.append((tb_, tb_, [WaitVM('Tl'), WaitLG('ifr'), I('s_barrier')]))
    for z in range(28):
        lo = max(tb_, ix['g', 14 + (z >> 1), 3])
        rd_.append((lo, max(lo, ix['i', z] - 4), f"ds_read_b128 {ar(112+4*z,4)}, v{VT1 if z & 1 else VT0} offset:{2048*(z>>1)}"))
    xs = []
    for qq in range(2):
        for z in range(2): xs.append((GE + 8, n2 - 2, f"v_permlane32_swap_b32 v{XR+4*qq+z}, v{XR+4*qq+2+z}"))
    for z in range(8):
        xs.append((GE + 8, n2 - 2, f"v_lshlrev_b32 v{XU+2*z}, 16, v{XR+z}"))
        xs.append((GE + 8, n2 - 2, f"v_and_b32 v{XU+2*z+1}, {sMASK}, v{XR+z}"))
    xs.append((GE + 8, n2 - 2, f"s_mov_b32 {sE1}, {f32bits(-math.log2(math.e)):#x}"))
    red = []
    for lam in range(1, 4):
        for q in range(4): red.append(I(f"ds_write_b128 v{VIM+lam-1}, {vr(GA[lam]+4*q,4)} offset:{1024*q}", 'pw'))
    red.append([WaitLG('pw'), I('s_barrier')])
    for lam in range(1, 4):
        for q in range(4): red.append(f"ds_read_b128 {vr(GA[lam]+4*q,4)}, v{VIM+3} offset:{(lam-1)*4096+1024*q}")
    Gq = GA[0]
    for quad in range(4):
        r = [4 * quad + k for k in range(4)]
        for lam in range(1, 4): red += [f"v_add_f32 v{Gq+k}, v{Gq+k}, v{GA[lam]+k}" for k in r]
        T = GA[1]
        red += [f"v_mul_f32 v{T+k}, {sE1}, v{Gq+k}" for k in r] + [f"v_exp_f32 v{T+k}, v{T+k}" for k in r] + [f"v_add_f32 v{T+k}, 1.0, v{T+k}" for k in r]
        red += [f"v_rcp_f32 v{T+k}, v{T+k}" for k in r] + [f"v_mul_f32 v{Gq+k}, v{Gq+k}, v{T+k}" for k in r]
    nin = min(len(red), 5 * (last - n2))
    reds = [(max(n2 + 1, tb_ + 1), last, x) for x in red[:nin]]
    stm = sorted([(x, x, stamp_i(n)) for n, x in dict(p1=n0 - 1, p1b=p1b - 1, g2=n1 - 1, idft=n2 - 1, s8=ix[8, 0], s16=ix[16, 0], s24=ix[24, 0], k14=ix['p', 14, 0], k42=ix['p', 42, 0], u7=gq(7), u14=gq(14), u21=gq(21)).items() if stamp_i(n)], key=lambda x: x[0])
    P.add(weave(spine, [trs, idc, vm, stb, epi, misc, gens, rd_, xs, reds, stm], report=rep))
    print("n0", n0, "p1b", p1b, "n1", n1, "n2", n2, "bars", bar, file=sys.stderr)
    K = 32
    for z in range(8): P.e(f"v_cvt_pk_bf16_f32 v{K+z}, v{D1+2*z}, v{D1+2*z+1}")
    for ss in range(2): P.e(f"{M32} {vr(SA,16)}, {vr(K+4*ss,4)}, {vr(DPF+4*ss,4)}, {vr(SA,16) if ss else 0}")
    P.add(red[nin:])
    for r in range(16): P.e(f"v_fma_f32 v{Gq+r}, v{SA+r}, v{Gq+r}, v{XU+r}")
    for z in range(8): P.e(f"v_cvt_pk_bf16_f32 v{K+z}, v{Gq+2*z}, v{Gq+2*z+1}")
    for qq in range(2):
        for z in range(2): P.e(f"v_permlane32_swap_b32 v{K+4*qq+z}, v{K+4*qq+2+z}")
    P.e(f"buffer_store_dwordx4 {vr(K,4)}, v{VXO}, {OUT_}, {sG2} offen")
    P.e(f"buffer_store_dwordx4 {vr(K+4,4)}, v{VXO}, {OUT_}, {sG2} offen offset:32")
    stamp_out(P, len(SEL) - 1, sBID)

def build():
    rep = []
    P = Prog(); entry(P); main(P, rep)
    P.raw("L_end:"); P.e("s_endpgm")
    aux(P, rep)
    body = P.finalize() + "".join(slow_paths) + "L_code_end:\n"
    print(P.stats, file=sys.stderr)
    for k, r in enumerate(rep): print(''.join('%x' % min(x, 15) for x in r), sum(max(32 if k == 0 else 16, 8 + 4 * x) for x in r[1:]), file=sys.stderr)
    lbl = NAME + "_kernel"
    s = f"; @launch grid=({NAUX+NMAIN},1,1) block=(256,1,1) lds=163840\n"
    s += '.amdgcn_target "amdgcn-amd-amdhsa--gfx950"\n.text\n' + G.kernel_text(lbl, body)
    s += '.section .rodata,"a"\n' + G.descriptor(lbl) + tables()
    return s
if __name__ == "__main__":
    STAMPS = 'stamps' in sys.argv
    for a in sys.argv:
        if a.startswith('exfil='): EXFIL = a[6:]; STAMPS = True
        if a.startswith('sel='): SEL[:] = ['start'] + a[4:].split(',') + ['end']
        if a.startswith('sela='): SELA[:] = ['start'] + a[5:].split(',') + ['end']
        if a.startswith('opt:'):
            k, v = a[4:].split('='); OPT[k] = eval(v)
    txt = build()
    open(sys.argv[1], "w").write(txt)
```

```python
import sys, math
import numpy as np
from asmlib import *
import gen as G
from gen import (NAME, SLOT, X_, W1_, W3_, W2_, WR_, WI_, OUT_, WS_, TAB_, DBG_,
                 sW, sI, sJ, sP, sK, sT, sE, sN2, sMASK, sONES, sW4K, sA, sB, sC, sD, sH0, sH1,
                 vr, ar, XF, ACC, ABUF, L16, f32bits, bfbits, dma, cosr, PAIRS)
NAUX = 32; NMAIN = 224
HBUF = 0; W2F = 0x1000000; TBUF = 0x1800000; YBUF = 0x1C00000
FLG = 0x2000000
HF = [FLG + 0x4000 * k for k in range(4)]; YF = FLG + 0x10000; TF = YF + 14336; WF = FLG + 0x14000; TF2 = FLG + 0x17800
STAMP = 0x2100000; WS_SIZE = 0x2120000
sPOL = 's7'
DP = 0; IDT_ = 2048; TAB_SIZE = 4096
sBID = 's59'; sE1, sE2, sE3, sE4 = 's70', 's71', 's4', 's5'
sF1, sF2, sF3, sF4 = 's64', 's65', 's68', 's69'
ROT = [f's{72+i}' for i in range(7)]; DBO = [f's{79+i}' for i in range(7)]
M32 = "v_mfma_f32_32x32x16_bf16"; M16 = "v_mfma_f32_16x16x32_bf16"
STAMPS = False; EXFIL = None; SPIN = 50000
OPT = dict()
ST0 = 86
SEL = ['start', 'iss', 'arr', 'p0', 'p1', 'g2', 'idft', 'end']
SELA = ['start', 'prep', 'y', 'c0', 'c64', 'c128', 'inv', 'end']
ROLE = ['main']
def stamp_i(n):
    sel = SEL if ROLE[0] == 'main' else SELA
    if not STAMPS or n not in sel: return []
    k = sel.index(n)
    return [I(f"{'s_memrealtime' if OPT.get('RT') else 's_memtime'} s[{ST0+2*k}:{ST0+1+2*k}]")]
def stamp(P, n): P.add(stamp_i(n))
def stamp_out(P, n, idreg):
    if EXFIL is not None: return exfil_end(P, n)
    if not STAMPS: return
    P.e("s_waitcnt vmcnt(0)")
    P.e(f"{'s_memrealtime' if OPT.get('RT') else 's_memtime'} s[{ST0+2*n}:{ST0+1+2*n}]\ns_memrealtime s[4:5]\ns_waitcnt lgkmcnt(0)")
    P.e(f"s_lshl_b32 {sA}, {idreg}, 2\ns_add_u32 {sA}, {sA}, {sW}\ns_lshl_b32 {sA}, {sA}, 6\ns_add_u32 {sA}, {sA}, {STAMP}")
    P.e("v_mov_b32 v2, 0")
    for k in range(n + 1):
        P.e(f"v_mov_b32 v3, s{ST0+2*k}\nbuffer_store_dword v3, v2, {WS_}, {sA} offen offset:{4*k}")
    P.e(f"v_mov_b32 v3, s6\nbuffer_store_dword v3, v2, {WS_}, {sA} offen offset:56")
    P.e(f"v_mov_b32 v3, s4\nbuffer_store_dword v3, v2, {WS_}, {sA} offen offset:60")
def exfil_end(P, n):
    if getattr(P, 'exf', False): return
    P.exf = True
    P.e(f"s_waitcnt vmcnt(0)\ns_memtime s[{ST0+2*n}:{ST0+1+2*n}]\ns_waitcnt lgkmcnt(0)")
    a, b = [SEL.index(x) for x in EXFIL.split('-')]
    P.e(f"s_sub_u32 {sB}, s{ST0+2*int(b)}, s{ST0+2*int(a)}\ns_lshr_b32 {sB}, {sB}, 2\ns_add_u32 {sB}, {sB}, 10000\ns_mov_b32 s3, 0")
    P.raw("L_exf:", sync=True)
    P.e(f"""s_memrealtime s[4:5]
    s_waitcnt lgkmcnt(0)
    s_sub_u32 s4, s4, s6
    s_cmp_ge_u32 s4, {sB}
    s_cbranch_scc1 L_end
    s_add_u32 s3, s3, 1
    s_cmp_lt_u32 s3, 100000
    s_cbranch_scc1 L_exf""")

def tables():
    def dwords(v):
        w = [v[i] | (v[i + 1] << 16) for i in range(0, len(v), 2)]
        return ''.join('.long ' + ','.join(f'{x:#x}' for x in w[i:i + 8]) + '\n' for i in range(0, len(w), 8))
    s = '.p2align 8\nTABS:\n'
    v = []
    for ss in range(2):
        for l in range(64):
            for e in range(8):
                n1 = l & 31; row = 16 * ss + 8 * (e >> 2) + 4 * (l >> 5) + (e & 3)
                q = row >> 1
                if q == 0: val = 1.0 if (n1 & 1) == row else 0.0
                else: val = cosr(q * n1, 32) if row % 2 == 0 else cosr(q * n1 + 8, 32)
                v.append(bfbits(val))
    s += dwords(v)
    v = []
    for half in range(2):
        for l in range(64):
            for e in range(8):
                v.append(0x3f80 if (l & 31) == 16 * half + 8 * (e >> 2) + 4 * (l >> 5) + (e & 3) else 0)
    return s + dwords(v)

slow_paths = []
def poll_check(name, loads, regs):
    t = regs[0]
    red = [f"v_min_u32 v{t}, v{t}, v{r}" for r in regs[1:]]
    slow_paths.append(f"L_slow_{name}:\n    s_mov_b32 s3, 0\nL_retry_{name}:\n    s_sleep {OPT.get('SLEEP', 6)}\n" + "".join(f"    {x}\n" for x in loads) + "    s_waitcnt vmcnt(0)\n" +
                      "".join(f"    {x}\n" for x in red) +
                      f"    v_cmp_eq_u32 vcc, 0, v{t}\n    s_add_u32 s3, s3, 1\n    s_cbranch_vccz L_ok_{name}\n    s_cmp_lt_u32 s3, {SPIN}\n"
                      f"    s_cbranch_scc1 L_retry_{name}\n    s_branch L_ok_{name}\n")
    return stamp_i('<' + name) + [I(x) for x in red] + [I(f"v_cmp_eq_u32 vcc, 0, v{t}"), I(f"s_cbranch_vccnz L_slow_{name}"), Raw(f"L_ok_{name}:")] + stamp_i(name + '>')
def flag_set(srd, soff, tags, one, zero):
    return stamp_i('<f' + str(tags)) + [WaitVM(tags)] + stamp_i('f' + str(tags) + '>') + [I("s_mov_b64 exec, 1"), I(f"buffer_store_dword v{one}, v{zero}, {srd}, {soff} offen sc1"), I("s_mov_b64 exec, -1")]
def lines(t): return [x.strip() for x in t.strip().split('\n') if x.strip()]
def spread(P, groups, work):
    k = 0
    for gi, grp in enumerate(groups):
        P.add([grp]); n = (len(work) * (gi + 1)) // len(groups); P.add(work[k:n]); k = n

def dbslot(d, c): return ([9, 0, 1, 2, 3, 4, 5] if d == 0 else [6, 7, 8, 9, 0, 1, 2])[c]
SCR = 143360
def db_dma(d, c):
    base = dbslot(d, c) * SLOT; tag = f"db{d}_{c}"
    pre = [I(f"s_add_u32 {DBO[c]}, {DBO[c]}, 128")] if d else []
    return [pre + dma(W1_, 'v4', DBO[c], (sW4K, base), 0, tag), dma(W1_, 'v5', DBO[c], None, 1024, tag),
            dma(W3_, 'v4', DBO[c], (sW4K, base + 2048), 0, tag), dma(W3_, 'v5', DBO[c], None, 1024, tag)]
def db_tr(d, s, m, fb, dst, tag=None):
    c, q = s >> 2, s & 3
    off = dbslot(d, c) * SLOT + q * 4096 + m * 2048
    win, off = off >> 16, off & 0xffff
    base = f"v{11 + 2 * win + fb}"
    return [I(f"ds_read_b64_tr_b16 {ar(dst, 2)}, {base} offset:{off}", tag), I(f"ds_read_b64_tr_b16 {ar(dst + 2, 2)}, {base} offset:{off + 512}", tag)]

def entry(P):
    if STAMPS: P.e("s_memrealtime s[6:7]\ns_waitcnt lgkmcnt(0)")
    P.e(f"s_mov_b32 {sPOL}, {OPT.get('POL', 0) * 8192}")
    stamp(P, 'start')
    P.e(f"s_cmp_ge_u32 s2, {NAUX+NMAIN}\ns_cbranch_scc1 L_end")
    for srd, off in ((8, 0), (12, 32), (16, 40), (20, 48), (36, 72), (44, 64), (24, 8), (28, 16), (32, 56)):
        P.e(f"s_load_dwordx2 s[{srd}:{srd+1}], s[0:1], {off}")
    P.e("s_getpc_b64 s[40:41]\ns_add_u32 s40, s40, TABS@rel32@lo+4\ns_addc_u32 s41, s41, TABS@rel32@hi+12")
    for srd, size in ((8, 1835008), (12, 1605632), (16, 1605632), (20, 1605632), (24, 921600), (28, 921600), (32, 1835008), (36, WS_SIZE), (40, TAB_SIZE), (44, 256)):
        P.e(f"s_mov_b32 s{srd+2}, {size}\ns_mov_b32 s{srd+3}, 0x20000")
    P.e(f"""
    v_lshrrev_b32 v2, 6, v0
    v_and_b32 v0, 63, v0
    v_readfirstlane_b32 {sW}, v2
    v_lshlrev_b32 {L16}, 4, v0
    s_mov_b32 {sMASK}, 0xffff0000
    v_lshrrev_b32 v23, 3, v0
    v_and_b32 v24, 7, v0
    v_lshrrev_b32 v25, 1, v23
    s_cmp_lt_u32 s2, {NAUX}
    s_cbranch_scc1 L_aux
    """)

def aux(P, rep):
    P.raw("L_aux:", sync=True)
    ROLE[0] = "aux"
    sQ, sKH = sP, sK
    WL = 65536; YL = 0; ZL = 65536; TL = 131072
    CC, SS, NS, IC, IS, IN = 0, 16, 32, 48, 64, 80
    YB = [96, 112]; ZB = [128, 160]
    WV = 144; XA = [16, 32]; VA = [48, 64]; OB = [80, 104]
    P.e(f"""
    s_getpc_b64 s[72:73]
    s_add_u32 s72, s72, {NAME}_kernel@rel32@lo+4
    s_addc_u32 s73, s73, {NAME}_kernel@rel32@hi+12
    s_mov_b32 s74, L_code_end-{NAME}_kernel
    s_mov_b32 s75, 0x20000
    s_lshr_b32 {sA}, s2, 3
    s_lshl_b32 {sA}, {sA}, 2
    s_add_u32 {sA}, {sA}, {sW}
    s_lshl_b32 {sA}, {sA}, 12
    v_and_b32 v2, 31, v0
    v_lshlrev_b32 v2, 7, v2
    buffer_load_dword v31, v2, s[72:75], {sA} offen
    s_and_b32 {sQ}, s2, 15
    s_lshr_b32 {sKH}, s2, 4
    v_mov_b32 v14, 0
    v_mov_b32 v15, 1
    s_lshl_b32 {sF3}, s2, 2
    s_add_u32 {sF3}, {sF3}, {sW}
    s_sub_u32 {sE1}, 32, {sQ}
    s_cmp_eq_u32 {sQ}, 0
    s_cselect_b32 {sE1}, 16, {sE1}
    s_cselect_b64 s[66:67], -1, 0
    s_and_b32 {sA}, {sW}, 1
    s_cmp_eq_u32 {sA}, 0
    s_cselect_b32 {sE2}, {sQ}, {sE1}
    s_mul_i32 {sE3}, {sE2}, 450
    s_mul_i32 {sA}, {sKH}, 224
    s_add_u32 {sE3}, {sE3}, {sA}
    s_add_u32 {sE3}, {sE3}, 2
    s_and_b32 {sE4}, {sE3}, 15
    s_sub_u32 {sE3}, {sE3}, {sE4}
    s_lshr_b32 {sA}, {sW}, 1
    s_mul_i32 {sA}, {sA}, {32*14400}
    s_add_u32 {sE3}, {sE3}, {sA}
    s_lshl_b32 {sF1}, {sW}, 14
    s_add_u32 {sF1}, {sF1}, {WL}
    v_lshrrev_b32 v26, 4, v0
    v_and_b32 v25, 15, v0
    v_lshlrev_b32 v24, 1, v26
    v_xor_b32 v24, v24, v25
    v_mul_u32_u24 v2, 57600, v26
    v_lshl_add_u32 v2, v24, 4, v2
    s_cmp_lt_u32 s2, 28
    s_waitcnt lgkmcnt(0)
    s_cbranch_scc1 L_nozero
    v_mov_b32 v8, 0
    v_mov_b32 v9, 0
    v_mov_b32 v10, 0
    v_mov_b32 v11, 0
    s_sub_u32 {sA}, {sF3}, 112
    s_mul_i32 {sA}, {sA}, 6144
    s_add_u32 {sA}, {sA}, {FLG}
    s_add_u32 {sB}, {sA}, 4096
    """)
    for k in range(4): P.e(f"buffer_store_dwordx4 v[8:11], {L16}, {WS_}, {sA} offen offset:{k*1024} sc1")
    for k in range(2): P.e(f"buffer_store_dwordx4 v[8:11], {L16}, {WS_}, {sB} offen offset:{k*1024} sc1")
    P.e(f"""
    s_sub_u32 {sA}, {sF3}, 112
    s_lshl_b32 {sA}, {sA}, 2
    s_waitcnt vmcnt(0)
    s_mov_b64 exec, 1
    buffer_store_dword v15, v14, {DBG_}, {sA} offen offset:128 sc1
    s_mov_b64 exec, -1
    """)
    P.raw("L_nozero:", sync=True)
    grpW = []
    for mat in range(2):
        for tt in range(2):
            for r in range(4):
                k = (mat * 2 + tt) * 4 + r
                grpW.append([I(f"s_add_u32 {sC}, {sE3}, {(16*tt+r)*14400}")] + dma(WI_ if mat else WR_, 'v2', sC, (sF1, 1024 * k), 0, 'W'))
    w = lines(f"""
    s_lshl_b32 {sA}, {sW}, 4
    v_add_u32 v3, {sA}, v25
    v_lshlrev_b32 v4, 7, v26
    v_add_u32 v6, {sE1}, v4
    v_add_u32 v4, {sQ}, v4
    v_mul_u32_u24 v4, v4, v3
    v_mul_u32_u24 v6, v6, v3
    v_cvt_f32_u32 v4, v4
    v_cvt_f32_u32 v6, v6
    v_cvt_f32_u32 v3, v3
    v_mul_f32 v4, {f32bits(1/2048):#x}, v4
    v_mul_f32 v6, {f32bits(1/2048):#x}, v6
    v_mul_f32 v3, {f32bits(1/64):#x}, v3
    s_mov_b32 {sJ}, {f32bits(2.0 / (2048 * 448)):#x}
    """)
    def pair(kf, base, m2, scale, dc, ds, dn):
        o = [f"v_fmamk_f32 v7, v{kf}, {f32bits(float(m2[0])):#x}, v{base}", f"v_fmamk_f32 v8, v{kf}, {f32bits(float(m2[1])):#x}, v{base}",
             "v_cos_f32 v9, v7", "v_cos_f32 v10, v8", "v_sin_f32 v7, v7", "v_sin_f32 v8, v8"]
        if scale: o += [f"v_mul_f32 v9, {sJ}, v9", f"v_mul_f32 v10, {sJ}, v10", f"v_mul_f32 v7, {sJ}, v7", f"v_mul_f32 v8, {sJ}, v8"]
        return o + ["v_cvt_pk_bf16_f32 v9, v9, v10", "v_cvt_pk_bf16_f32 v10, v7, v8", "v_cvt_pk_bf16_f32 v7, -v7, -v8",
                    f"v_accvgpr_write_b32 a{dc}, v9", f"v_accvgpr_write_b32 a{ds}, v10", f"v_accvgpr_write_b32 a{dn}, v7"]
    for c in range(2):
        for s in range(2):
            for z in range(4):
                o = 8 * c + 4 * s + z
                w += pair(3, 4 + 2 * c, [32 * s + 16 * (e >> 2) + (e & 3) for e in (2 * z, 2 * z + 1)], True, IC + o, IS + o, IN + o)
    w += [f"s_lshr_b32 {sA}, {sW}, 1", f"s_lshl_b32 {sA}, {sA}, 5", f"v_add_u32 v3, {sA}, v25", "v_lshlrev_b32 v4, 2, v26", "v_cvt_f32_u32 v4, v4"]
    for tt in range(2):
        w += [f"v_add_u32 v5, {16*tt}, v3", "v_cvt_f32_u32 v5, v5", f"v_mul_f32 v5, {f32bits(1/64):#x}, v5", "v_mul_f32 v6, v5, v4"]
        for s in range(2):
            for z in range(4):
                o = 8 * tt + 4 * s + z
                w += pair(5, 6, [32 * s + 16 * (e >> 2) + (e & 3) for e in (2 * z, 2 * z + 1)], False, CC + o, SS + o, NS + o)
    w += [f"v_mov_b32 v{WV+r}, 0" for r in range(112)]
    P.e(f"""
    v_min_u32 v11, 48, v0
    s_mul_i32 {sA}, {sF3}, 49
    v_add_u32 v11, {sA}, v11
    v_lshlrev_b32 v11, 8, v11
    """)
    for bit, off in ((2, 0), (1, 128)):
        if OPT.get('TOUCH', 1) & bit:
            P.raw(f"    buffer_load_dword v30, v11, {W1_}, 0 offen offset:{off}\n    buffer_load_dword v30, v11, {W3_}, 0 offen offset:{off}")
    P.add(grpW[:3]); spread(P, grpW[3:], w)
    stamp(P, 'st')
    zl = [f"buffer_load_dword v29, v28, {DBG_}, 0 offen offset:128 sc1"]
    P.e("v_lshlrev_b32 v28, 2, v25"); P.add(zl)
    P.e(f"v_lshlrev_b32 v3, 1, v25\nv_add_u32 v3, {sE4}, v3\nv_and_b32 v4, 15, v3\nv_lshl_add_u32 v4, v26, 8, v4\nv_add_u32 v4, {sF1}, v4\nv_lshrrev_b32 v3, 4, v3\nv_lshlrev_b32 v5, 1, v26")
    for jl in range(7):
        P.e(f"v_add_u32 v6, {2*jl}, v3\nv_xor_b32 v6, v5, v6\nv_lshl_add_u32 v{16+jl}, v6, 4, v4")
    P.waitvm('W')
    for jl in range(7):
        for k in range(16):
            P.e(f"ds_read_u16_d16_hi v{WV+16*jl+k}, v{16+jl} offset:{1024*k}")
    P.e(f"""
    v_lshrrev_b32 v23, 3, v0
    v_and_b32 v24, 7, v0
    v_bfe_u32 v27, v0, 4, 2
    v_xor_b32 v27, v24, v27
    v_lshlrev_b32 v2, 7, v23
    v_lshl_add_u32 v2, v27, 4, v2
    v_lshlrev_b32 v3, 4, v25
    v_min_u32 v27, 2, v26
    v_lshl_add_u32 v4, v27, 10, v3
    v_add_u32 v4, 4096, v4
    v_lshl_add_u32 v3, v26, 10, v3
    v_lshrrev_b32 v27, 2, v0
    v_lshlrev_b32 v5, 7, v27
    v_bfe_u32 v27, v0, 3, 2
    s_and_b32 {sA}, {sW}, 1
    v_xor_b32 v27, {sA}, v27
    v_lshl_add_u32 v5, v27, 4, v5
    v_bfe_u32 v27, v0, 1, 1
    v_lshl_add_u32 v5, v27, 6, v5
    v_and_b32 v27, 1, v0
    v_lshl_add_u32 v5, v27, 3, v5
    v_xor_b32 v6, 32, v5
    s_lshl_b32 {sA}, {sA}, 12
    s_lshr_b32 {sB}, {sW}, 1
    s_lshl_b32 {sB}, {sB}, 11
    s_add_u32 {sA}, {sA}, {sB}
    s_add_u32 {sA}, {sA}, {ZL}
    v_add_u32 v7, {sA}, {L16}
    v_add_u32 v12, {ZL}, {L16}
    s_bfe_u32 {sA}, {sQ}, 0x20001
    v_xor_b32 v27, {sA}, v26
    v_lshlrev_b32 v27, 1, v27
    v_xor_b32 v27, v27, v24
    v_lshlrev_b32 v8, 7, v25
    v_lshl_add_u32 v8, v27, 4, v8
    s_lshl_b32 {sA}, {sW}, 12
    s_add_u32 {sA}, {sA}, {TL}
    v_add_u32 v8, {sA}, v8
    v_xor_b32 v9, 16, v8
    v_xor_b32 v27, v23, v24
    v_lshlrev_b32 v10, 7, v23
    v_lshl_add_u32 v10, v27, 4, v10
    v_add_u32 v10, {sA}, v10
    v_and_b32 v27, 1, v23
    v_mul_u32_u24 v11, 28672, v27
    v_lshl_add_u32 v11, v24, 4, v11
    v_lshrrev_b32 v13, 4, v0
    v_lshlrev_b32 v13, 17, v13
    s_mul_i32 {sE1}, {sKH}, 7168
    s_lshl_b32 {sA}, {sW}, 8
    s_add_u32 {sE1}, {sE1}, {sA}
    s_add_u32 {sE1}, {sE1}, {YF}
    s_mul_i32 {sE2}, {sKH}, {7*131072}
    s_and_b32 {sA}, {sQ}, 3
    s_lshr_b32 {sB}, {sQ}, 3
    s_lshl_b32 {sB}, {sB}, 2
    s_add_u32 {sA}, {sA}, {sB}
    s_lshl_b32 {sA}, {sA}, 14
    s_add_u32 {sE2}, {sE2}, {sA}
    s_bfe_u32 {sA}, {sQ}, 0x10002
    s_lshl_b32 {sF3}, {sA}, 13
    s_lshl_b32 {sF1}, {sW}, 11
    s_add_u32 {sE2}, {sE2}, {sF1}
    s_add_u32 {sE2}, {sE2}, {YBUF}
    s_and_b32 {sE3}, {sW}, 1
    s_lshl_b32 {sE3}, {sE3}, 20
    s_add_u32 {sE3}, {sE3}, {TBUF}
    s_lshr_b32 {sF4}, {sW}, 1
    s_lshl_b32 {sF4}, {sF4}, 13
    s_mul_i32 {sT}, {sKH}, 14336
    s_lshl_b32 {sA}, {sQ}, 7
    s_add_u32 {sT}, {sT}, {sA}
    s_lshl_b32 {sE4}, {sW}, 9
    s_lshl_b32 {sA}, s2, 4
    s_add_u32 {sE4}, {sE4}, {sA}
    s_add_u32 {sE4}, {sE4}, {TF}
    """)
    P.add(poll_check('az', zl, [29]))
    P.e(f"""
    s_xor_b32 {sF3}, {sF3}, {sPOL}
    s_add_u32 {sE2}, {sE2}, {sF3}
    s_xor_b32 {sF4}, {sF4}, {sPOL}
    s_add_u32 {sE3}, {sE3}, {sF4}
    s_add_u32 {sF4}, {sE3}, {4*131072}
    v_add_u32 v11, {sT}, v11
    s_waitcnt lgkmcnt(0)
    """)
    stamp(P, 'prep')
    yl = [f"buffer_load_dword v29, v3, {WS_}, {sE1} offen sc1", f"buffer_load_dword v30, v4, {WS_}, {sE1} offen sc1"]
    P.add(yl); P.add(poll_check('ay', yl, [29, 30]))
    stamp(P, 'y')
    for jl in range(7):
        P.add([I(f"s_add_u32 {sC}, {sE2}, {jl*131072}")] + dma(WS_, 'v2', sC, (sF1, YL + 8192 * jl), 0, f'Y{jl}', 'sc1') + dma(WS_, 'v2', sC, None, 1024, f'Y{jl}', 'sc1'))
    AO = OPT.get('AO', 1)
    order = ['F0', 'F1', 'F2', 'F3', 'I0', 'I1', 'F4', 'F5', 'I2', 'I3', 'F6', 'I4', 'I5', 'I6'] if AO == 0 else ['F0', 'F1', 'F2', 'F3', 'I0', 'I1', 'I2', 'F4', 'I3', 'F5', 'F6', 'I4', 'I5', 'I6']
    at = {n: 16 * i for i, n in enumerate(order)}
    spine = []
    for n in order:
        k = int(n[1])
        for k4 in range(4):
            s, term = k4 >> 1, k4 & 1
            for x in range(2):
                for y in range(2):
                    if n[0] == 'F':
                        part, tt = x, y; b = YB[k & 1]; acc = XA[k & 1] + 8 * part + 4 * tt
                        if term == 0: A, B = CC + 8 * tt + 4 * s, b + 8 * part + 4 * s
                        else: A, B = (NS if part else SS) + 8 * tt + 4 * s, b + 8 * (1 - part) + 4 * s
                    else:
                        c, part = x, y; acc = VA[k & 1] + 8 * c + 4 * part
                        A = ZB[k & 1] + 16 * c + 8 * s + 4 * term; B = ((IC, IN), (IS, IC))[part][term] + 8 * c + 4 * s
                    spine.append(f"{M16} {vr(acc,4)}, {ar(A,4)}, {ar(B,4)}, {vr(acc,4) if k4 else 0}")
    N = len(spine)
    def fv(k):
        xa = XA[k & 1]; wv = WV + 16 * k; ops = []
        for r in range(8): ops += [f"v_mul_f32 v{14+(r&1)}, v{xa+8+r}, v{wv+8+r}", f"v_mul_f32 v{wv+8+r}, v{xa+r}, v{wv+8+r}",
                                   f"v_fma_f32 v{xa+r}, v{xa+r}, v{wv+r}, -v{14+(r&1)}", f"v_fma_f32 v{xa+8+r}, v{xa+8+r}, v{wv+r}, v{wv+8+r}"]
        ops += [f"v_cvt_pk_bf16_f32 v{wv+z}, v{xa+2*z}, v{xa+2*z+1}" for z in range(8)]
        return ops + [I(f"ds_write_b128 v7, {vr(wv+4*part,4)} offset:{8192*k+1024*part}", f'zw{k}') for part in range(2)]
    def iv(k):
        v = VA[k & 1]; o = OB[k & 1]; tb = 2048 * (k & 1)
        ops = [f"v_add_f32 v{o+r}, v{v+r}, v{v+8+r}" for r in range(8)] + [f"v_sub_f32 v{v+r}, v{v+r}, v{v+8+r}" for r in range(8)]
        ops += [f"v_cvt_pk_bf16_f32 v{o+8+z}, v{o+2*z}, v{o+2*z+1}" for z in range(4)]
        ops += [f"v_cvt_pk_bf16_f32 v{o+z}, v{v+2*z}, v{v+2*z+1}" for z in range(4)]
        ops += [f"v_cvt_pk_bf16_f32 v{o+4+z}, -v{v+2*z}, -v{v+2*z+1}" for z in range(2)]
        ops += [f"v_cndmask_b32 v{o+12+z}, v{o+2+z}, v{o+z}, s[66:67]" for z in range(2)]
        ops += [f"v_cndmask_b32 v{o+14+z}, v{o+4+z}, v{o+2+z}, s[66:67]" for z in range(2)]
        ops += [I(f"ds_write_b128 v8, {vr(o+8,4)} offset:{tb}", f'tw{k}'), I(f"ds_write_b128 v9, {vr(o+12,4)} offset:{tb}", f'tw{k}')]
        ops2 = [WaitLG(f'tw{k}'), f"ds_read_b128 {vr(o+16,4)}, v10 offset:{tb}", f"ds_read_b128 {vr(o+20,4)}, v10 offset:{tb+1024}"]
        ops3 = ["v_and_b32 v4, 0xe000, v11", "v_add3_u32 v4, v4, v11, v13", I(f"buffer_store_dwordx4 {vr(o+16,4)}, v4, {WS_}, {sE3} offen sc1", f'T{k}'),
                I(f"buffer_store_dwordx4 {vr(o+20,4)}, v4, {WS_}, {sF4} offen sc1", f'T{k}'), "v_add_u32 v11, 0x800, v11"]
        return ops, ops2, ops3
    ev = []
    ev.append((-1, -1, [WaitVM(['Y0', 'Y1']), I('s_barrier')]))
    zb = {0: at['F3'] + 3, 1: at['F3'] + 3, 2: at['I1'] + 15, 3: at['I1'] + 15, 4: at['I3'] + 15, 5: at['I3'] + 15, 6: at['I5'] + 4}
    if AO: zb = {0: at['F3'] + 3, 1: at['F3'] + 3, 2: at['I1'] + 3, 3: at['I1'] + 3, 4: at['F6'] + 3, 5: at['I4'] + 3, 6: at['I5'] + 3}
    for k in range(7):
        st = at[f'F{k}']; lo = -1 if k < 2 else max(at[f'F{k-2}'] + 15, st - 30)
        for part in range(2):
            for s in range(2):
                for t in range(2):
                    ev.append((lo, max(lo, st - 6), I(f"ds_read_b64_tr_b16 {ar(YB[k&1]+8*part+4*s+2*t,2)}, v{5+part} offset:{YL+8192*k+(32*s+16*t)*128}", f'y{k}')))
        ev.append((st - 1, st - 1, WaitLG(f'y{k}')))
        if k in ((1, 3, 4, 5, 6) if AO else (1, 3, 5, 6)): ev.append((zb[k], zb[k], [WaitLG(f'zw{k}')] + ([WaitVM('Y6')] if k == 1 else []) + [I('s_barrier')]))
    for k in range(7):
        si = at[f'I{k}']; lo = max(zb[k], at[f'I{k-2}'] + 15 if k >= 2 else 0)
        for f in range(8): ev.append((lo + 0.5, max(lo + 1, si - 5), I(f"ds_read_b128 {ar(ZB[k&1]+4*f,4)}, v12 offset:{8192*k+1024*f}", f'z{k}')))
        ev.append((si - 1, si - 1, WaitLG(f'z{k}')))
    ev.append((14, 14, [WaitVM(['Y2', 'Y3']), I('s_barrier')]))
    ev.sort(key=lambda x: (x[0], x[1]))
    ev = [(int(a), b, c) for a, b, c in ev]
    s1 = []; s2 = []
    for n in order[:-1]:
        k = int(n[1]); st = at[n]
        if n[0] == 'F': s1 += [(st + 17, st + 31, x) for x in fv(k)]
        else:
            a, b, c = iv(k)
            s1 += [(st + 17, st + 31, x) for x in a]
            if st + 47 < N: s2 += [(st + 36, st + 38, x) for x in b] + [(st + 44, st + 47, x) for x in c]
    tf1 = at['I3'] + 47 + OPT.get('ATF', 26)
    k4 = len([x for x in s2 if x[0] <= tf1])
    s2.insert(k4, (tf1, tf1, ["v_mov_b32 v2, 0", "v_mov_b32 v3, 1"] + flag_set(WS_, sE4, 'T3', 3, 2) + [I(f"s_add_u32 {sE4}, {sE4}, {TF2-TF}")]))
    sa = [(x, x, stamp_i(n)) for n, x in dict(c0=0, c64=64, c128=128).items() if stamp_i(n)]
    P.add(weave(spine, [ev, s1, s2, sa], report=rep))
    a5, b5, c5 = iv(5); a6, b6, c6 = iv(6)
    P.add(b5); P.add(a6); P.add(c5); P.add(b6); P.add(c6)
    P.e("v_mov_b32 v14, 0\nv_mov_b32 v15, 1")
    stamp(P, 'inv')
    P.add(flag_set(WS_, sE4, 'T6', 15, 14))
    if STAMPS and EXFIL is None:
        P.e(f"s_add_u32 {sBID}, s2, {NMAIN}"); stamp_out(P, len(SELA) - 1, sBID)
    P.e("s_endpgm")

def main(P, rep):
    sG1, sG2, sG3 = sI, sP, sK
    P.e(f"""
    s_sub_u32 {sBID}, s2, {NAUX}
    s_and_b32 {sP}, {sBID}, 7
    s_lshr_b32 {sK}, {sBID}, 3
    s_and_b32 {sA}, {sK}, 3
    s_lshr_b32 {sE}, {sK}, 2
    s_lshr_b32 {sI}, {sP}, 1
    s_lshl_b32 {sI}, {sI}, 2
    s_add_u32 {sI}, {sI}, {sA}
    s_and_b32 {sJ}, {sP}, 1
    s_mul_i32 {sJ}, {sJ}, 7
    s_add_u32 {sJ}, {sJ}, {sE}
    s_lshl_b32 {sT}, {sP}, 2
    s_add_u32 {sT}, {sT}, {sA}
    s_lshl_b32 {sN2}, {sI}, 2
    s_add_u32 {sN2}, {sN2}, {sW}
    s_lshl_b32 {sW4K}, {sW}, 12
    s_mov_b32 {sONES}, 0x3f803f80
    s_and_b32 {sA}, {sP}, 6
    s_add_u32 {sA}, {sA}, {sE}
    s_lshl_b32 {sA}, {sA}, 7
    """)
    for i in range(7):
        if i: P.e(f"s_add_u32 {sA}, {ROT[i-1]}, 128")
        P.e(f"s_sub_u32 {sB}, {sA}, 896\ns_cmp_ge_u32 {sA}, 896\ns_cselect_b32 {ROT[i]}, {sB}, {sA}")
    P.e(f"""
    v_xor_b32 v26, v24, v25
    v_mul_u32_u24 v2, 57344, v23
    v_lshl_add_u32 v2, v26, 4, v2
    v_xor_b32 v3, 64, v2
    s_mul_i32 {sE1}, {sN2}, 896
    """)
    wset = lines(f"""
    s_lshl_b32 {sF3}, {sBID}, 2
    s_add_u32 {sF3}, {sF3}, {sW}
    s_mul_i32 {sF4}, {sF3}, 9363
    s_lshr_b32 {sF4}, {sF4}, 16
    s_mul_i32 {sA}, {sF4}, 7
    s_sub_u32 {sF3}, {sF3}, {sA}
    s_mul_i32 {sF1}, {sF4}, {16*896}
    s_lshl_b32 {sA}, {sF3}, 7
    s_add_u32 {sF1}, {sF1}, {sA}
    s_lshr_b32 {sA}, {sF4}, 3
    s_lshl_b32 {sA}, {sA}, 15
    s_and_b32 {sB}, {sF4}, 1
    s_lshl_b32 {sB}, {sB}, 14
    s_add_u32 {sA}, {sA}, {sB}
    s_bfe_u32 {sB}, {sF4}, 0x20001
    s_lshl_b32 {sB}, {sB}, 11
    s_add_u32 {sA}, {sA}, {sB}
    s_bfe_u32 {sB}, {sF3}, 0x20002
    s_lshl_b32 {sB}, {sB}, 22
    s_add_u32 {sA}, {sA}, {sB}
    s_and_b32 {sB}, {sF3}, 3
    s_lshl_b32 {sB}, {sB}, 19
    s_add_u32 {sA}, {sA}, {sB}
    s_add_u32 {sF2}, {sA}, {W2F}
    s_lshl_b32 {sA}, {sF3}, 11
    s_lshl_b32 {sB}, {sF4}, 4
    s_add_u32 {sA}, {sA}, {sB}
    s_add_u32 {sF3}, {sA}, {WF}
    v_lshrrev_b32 v17, 3, v0
    v_mul_u32_u24 v18, 896, v17
    v_bfe_u32 v17, v0, 4, 1
    v_lshlrev_b32 v17, 2, v17
    v_and_b32 v19, 7, v0
    v_xor_b32 v17, v17, v19
    v_lshl_add_u32 v18, v17, 4, v18
    """)
    wset.append([f"s_cmp_lt_u32 {sF4}, 112", f"s_cselect_b32 {sF2}, {sF2}, {WS_SIZE}", f"s_cselect_b32 {sF3}, {sF3}, {WS_SIZE}"])
    wdma = dma(W2_, 'v18', sF1, (sW4K, 2 * SLOT), 0, 'wt') + [I(f"s_add_u32 {sF1}, {sF1}, {8*896-1024}")] + dma(W2_, 'v18', sF1, None, 1024, 'wt')
    wtr = lines(f"""
    v_bfe_u32 v21, v0, 5, 1
    v_lshlrev_b32 v21, 9, v21
    v_sub_u32 v21, v11, v21
    v_add_u32 v21, {2*SLOT}, v21
    v_add_u32 v21, {sW4K}, v21
    ds_read_b64_tr_b16 v[240:241], v21
    ds_read_b64_tr_b16 v[242:243], v21 offset:1024
    v_xor_b32 v21, 64, v21
    ds_read_b64_tr_b16 v[244:245], v21
    ds_read_b64_tr_b16 v[246:247], v21 offset:1024
    """)
    wst = [I(f"buffer_store_dwordx4 {vr(240+4*dt,4)}, {L16}, {WS_}, {sF2} offen offset:{1024*dt} sc1", 'wj') for dt in range(2)]
    wst = wst + [I(f"s_add_u32 {sF2}, {sF2}, 8192")] + [I(x.text, 'wj') for x in wst]
    def xdma(c):
        o = []
        for rb in range(4):
            pre = [I(f"s_add_u32 {sC}, {sE1}, {ROT[c]}")] if rb == 0 else [I(f"s_add_u32 {sC}, {sC}, {8*57344-1024}")]
            o.append(pre + dma(X_, 'v3' if rb & 1 else 'v2', sC, (sW4K, c * SLOT) if rb == 0 else None, rb * 1024, f'x{c}'))
        return o
    BT, IDM = 200, 216
    setup = lines(f"""
    v_lshrrev_b32 v4, 3, v0
    v_mul_u32_u24 v4, 3584, v4
    v_lshl_add_u32 v4, v17, 4, v4
    v_add_u32 v5, {8*3584-1024}, v4
    s_mul_i32 {sA}, {sW}, {16*3584}
    s_lshl_b32 {sB}, {sJ}, 8
    s_add_u32 {sA}, {sA}, {sB}
    """)
    for i in range(7): setup += [f"s_mul_i32 {DBO[i]}, {ROT[i]}, 1792", f"s_add_u32 {DBO[i]}, {DBO[i]}, {sA}"]
    setup += lines(f"""
    v_lshrrev_b32 v26, 5, v0
    v_add_u32 v10, {7*SLOT}, {L16}
    s_lshl_b32 {sA}, {sW}, 10
    v_add_u32 v27, {sA}, v10
    v_and_b32 v23, 15, v0
    s_lshl_b32 {sA}, {sJ}, 4
    s_add_u32 {sA}, {sA}, 1
    v_add_u32 v23, {sA}, v23
    v_cvt_f32_u32 v23, v23
    v_mul_f32 v23, {f32bits(1/448):#x}, v23
    v_bfe_u32 v24, v0, 4, 1
    v_cvt_f32_u32 v24, v24
    v_mul_f32 v24, 0x3e800000, v24
    s_lshl_b32 {sA}, {sW}, 4
    v_lshl_add_u32 v25, v26, 3, {sA}
    """)
    for u in range(7):
        t = 144 + 16 * (u & 1)
        setup += [f"s_lshr_b32 {sA}, {ROT[u]}, 1", f"v_add_u32 v{t}, {sA}, v25", f"v_cvt_f32_u32 v{t}, v{t}", f"v_fma_f32 v{t}, v{t}, v23, v24"]
        setup += [f"v_fmamk_f32 v{t+e}, v23, {f32bits(float(e)):#x}, v{t}" for e in range(1, 8)]
        setup += [f"v_cos_f32 v{t+e}, v{t+e}" for e in range(8)]
        setup += [f"v_cvt_pk_bf16_f32 v{t+8+z}, v{t+2*z}, v{t+2*z+1}" for z in range(4)]
        setup += [f"ds_write_b128 v27, {vr(t+8,4)} offset:{4096*u}"]
    setup += lines(f"""
    v_and_b32 v23, 31, v0
    v_lshlrev_b32 v24, 7, v23
    v_add_u32 v24, {sW4K}, v24
    v_bfe_u32 v25, v0, 1, 3
    v_xor_b32 v25, v25, v26
    v_lshl_add_u32 v6, v25, 4, v24
    v_xor_b32 v7, 32, v6
    v_xor_b32 v8, 64, v6
    v_xor_b32 v9, 0x60, v6
    v_mov_b32 v28, 0
    v_mov_b32 v29, 0
    v_mov_b32 v30, 0
    v_mov_b32 v31, 0
    """)
    setup2 = lines(f"""
    v_bfe_u32 v24, v0, 2, 2
    v_lshlrev_b32 v23, 7, v24
    v_bfe_u32 v25, v0, 4, 1
    v_lshl_add_u32 v23, v25, 5, v23
    v_and_b32 v25, 3, v0
    v_lshl_add_u32 v23, v25, 3, v23
    v_bfe_u32 v24, v0, 3, 1
    v_lshl_add_u32 v11, v24, 6, v23
    v_lshl_add_u32 v11, v26, 10, v11
    v_xor_b32 v12, 64, v11
    v_add_u32 v13, 0x10000, v11
    v_add_u32 v14, 0x10000, v12
    v_add_u32 v15, 0x20000, v11
    v_add_u32 v16, 0x20000, v12
    """)
    setup2 += lines(f"""
    v_bfe_u32 v23, v0, 1, 2
    v_lshlrev_b32 v22, 14, v23
    v_bfe_u32 v23, v0, 4, 1
    v_lshl_add_u32 v22, v23, 16, v22
    v_bfe_u32 v23, v0, 3, 1
    v_lshl_add_u32 v22, v23, 13, v22
    v_bfe_u32 v23, v0, 1, 4
    v_lshl_add_u32 v22, v26, 5, v22
    v_and_b32 v27, 1, v0
    v_lshl_add_u32 v22, v27, 4, v22
    v_sub_u32 v25, 32, v23
    v_cmp_eq_u32 vcc, 0, v23
    v_lshlrev_b32 v24, 8, v26
    v_add_u32 v24, {sN2}, v24
    v_cndmask_b32 v25, v25, 16, vcc
    v_cmp_eq_u32 vcc, 0, v27
    v_cvt_f32_u32 v24, v24
    v_mul_f32 v24, {f32bits(1/2048):#x}, v24
    v_cndmask_b32 v23, v25, v23, vcc
    v_cvt_f32_u32 v23, v23
    v_mul_f32 v24, v23, v24
    v_mul_f32 v23, {f32bits(1/32):#x}, v23
    """)
    for ss in range(2):
        for z in range(4):
            n1 = [16 * ss + 8 * (e >> 2) + (e & 3) for e in (2 * z, 2 * z + 1)]
            setup2 += [f"v_fmamk_f32 v144, v23, {f32bits(float(n1[0])):#x}, v24", f"v_fmamk_f32 v145, v23, {f32bits(float(n1[1])):#x}, v24",
                       "v_cos_f32 v146, v144", "v_cos_f32 v147, v145", "v_sin_f32 v144, v144", "v_sin_f32 v145, v145",
                       "v_cvt_pk_bf16_f32 v146, v146, v147", "v_cvt_pk_bf16_f32 v144, v144, v145",
                       f"v_accvgpr_write_b32 a{BT+4*ss+z}, v146", f"v_accvgpr_write_b32 a{BT+8+4*ss+z}, v144"]
    NPRE = OPT.get('NPRE', 0)
    dbset, setup = setup[:21], setup[21:]
    shadow = wset + dbset + setup2
    NSH = OPT.get('NSH', 126)
    setup = setup + shadow[:len(shadow) - NSH]; shadow = shadow[len(shadow) - NSH:]
    P.add(setup[:NPRE])
    P.e("s_waitcnt lgkmcnt(0)")
    stamp(P, 'karg')
    NX0 = 4
    P.add(xdma(0) + xdma(1)); stamp(P, 'i8')
    if OPT.get('TLB', 0):
        P.e("s_mov_b64 exec, 1")
        for srd in (W1_, W3_, W2_, TAB_, WS_): P.e(f"buffer_load_dword v255, {L16}, {srd}, 0 offen")
        P.e("s_mov_b64 exec, -1")
    nq = int((len(setup) - NPRE) * OPT.get('NQ', 0.95)) + NPRE
    P.add(setup[NPRE:nq]); spread(P, xdma(2) + xdma(3), setup[nq:]); stamp(P, 'set')
    stamp(P, 'iss')
    DA = ACC[5]
    idl = [I(f"buffer_load_dwordx4 {ar(IDM+4*z,4)}, {L16}, {TAB_}, 0 offen offset:{IDT_+1024*z}") for z in range(2)]
    ORD = OPT.get('ORD', 0)
    if ORD == 0: later = sum([xdma(c) for c in range(NX0, 7)], []) + db_dma(0, 0) + db_dma(0, 1) + db_dma(0, 2) + [[], [], [], []]
    elif ORD == 3: later = sum([xdma(c) for c in range(NX0, 7)], []) + db_dma(0, 0) + db_dma(0, 1)[:2] + [[], []] + db_dma(0, 1)[2:] + [[], []] + db_dma(0, 2)
    elif ORD == 1: later = db_dma(0, 0) + sum([xdma(c) for c in range(NX0, 7)], []) + db_dma(0, 1) + db_dma(0, 2) + [[], [], [], []]
    else: later = xdma(4) + db_dma(0, 0) + xdma(5) + xdma(6) + db_dma(0, 1) + db_dma(0, 2) + [[], [], [], []]
    NDB = 3
    def rd(c):
        o = []
        for q in range(4):
            o.append(I(f"ds_read_b128 {vr(XF+16*c+4*q, 4)}, v{6+q} offset:{(c & 3) * SLOT}", f"xr{c}"))
            o.append(I(f"ds_read_b128 {ar(ABUF+16*(c&1)+4*q, 4)}, v10 offset:{(4*c+q)*1024}", f"xr{c}"))
        return o
    ONE, ZERO = 2, 3
    zld = f"buffer_load_dword v17, v18, {DBG_}, 0 offen offset:128 sc1"
    zpre = ["v_and_b32 v18, 15, v0", "v_lshlrev_b32 v18, 2, v18", zld, f"v_mov_b32 v{ONE}, 1", f"v_mov_b32 v{ZERO}, 0"]
    P.e("s_waitcnt lgkmcnt(0)\ns_barrier"); P.waitvm('x0'); stamp(P, 'x0'); P.add(rd(0))
    for c in range(7):
        dots = []
        for r in range(16):
            x = XF + 16 * c + r
            dots += [f"v_dot2c_f32_bf16 v{28+(r&1)}, {sONES}, v{x}", f"v_dot2c_f32_bf16 v{30+(r&1)}, v{x}, v{x}"]
        P.waitlg(f"xr{c}")
        nxt = []
        if c < 6:
            nxt = ([f"v_add_u32 v{6+q}, 0x10000, v{6+q}" for q in range(4)] if c == 3 else []) + [WaitVM(f'x{c+1}')] + stamp_i(f'x{c+1}') + rd(c + 1)
        for q in range(4):
            s = 4 * c + q
            P.e(f"{M32} {vr(DA,16)}, {vr(XF+4*s,4)}, {ar(ABUF+16*(c&1)+4*q,4)}, {vr(DA,16) if s else 0}")
            if q == 0: P.add(later[4 * c]); P.add(shadow[(len(shadow) * c) // 7:(len(shadow) * (2 * c + 1)) // 14])
            if q == 1: P.add(nxt[:len(nxt) - 4])
            if q == 2: P.add(nxt[len(nxt) - 4:] if nxt else []); P.add(later[4 * c + 1])
            if q == 3: P.add(shadow[(len(shadow) * (2 * c + 1)) // 14:(len(shadow) * (c + 1)) // 7])
        if c == 6: stamp(P, '<wt'); P.waitvm('wt'); stamp(P, 'wt>'); P.add(wtr)
        P.add(later[4 * c + 2]); P.add(dots[:16])
        if c == 3: pass
        P.add(later[4 * c + 3]); P.add(dots[16:])
        if c == OPT.get('IDC', 2): P.add(idl)
        if c == OPT.get('WDC', 2): P.add(wdma)
        if c == 4: P.add(zpre)
    stamp(P, 'arr')
    P.add(wst)
    CM = 240; IDT = ACC[4]
    P.e(f"""
    s_nop 2
    v_add_f32 v28, v28, v29
    v_add_f32 v30, v30, v31
    v_mov_b32 v29, v28
    v_mov_b32 v31, v30
    v_permlane32_swap_b32 v28, v29
    v_permlane32_swap_b32 v30, v31
    v_add_f32 v28, v28, v29
    v_add_f32 v30, v30, v31
    v_mul_f32 v19, {f32bits(-1/448):#x}, v28
    v_mul_f32 v30, {f32bits(1/448):#x}, v30
    """)
    for r in range(16): P.e(f"v_mov_b32 v{CM+r}, v19")
    def ident(pp, d): return [f"{M32} {vr(d,16)}, {ar(IDM,4)}, {vr(XF+8*pp,4)}, {vr(CM,16)}", f"{M32} {vr(d,16)}, {ar(IDM+4,4)}, {vr(XF+8*pp+4,4)}, {vr(d,16)}"]
    def identcvt(pp, d): return [f"v_cvt_pk_bf16_f32 v{XF+8*pp+z}, v{d+2*z}, v{d+2*z+1}" for z in range(8)]
    P.add(ident(0, ACC[0])); P.add(ident(1, ACC[1]))
    P.e(f"""
    v_fma_f32 v30, -v19, v19, v30
    v_max_f32 v30, 0, v30
    v_add_f32 v21, {f32bits(1e-5):#x}, v30
    v_rsq_f32 v29, v21
    v_and_b32 v23, 31, v0
    s_lshl_b32 {sA}, {sW}, 7
    s_add_u32 {sA}, {sA}, {SCR}
    v_lshl_add_u32 v23, v23, 2, {sA}
    ds_write_b32 v23, v29
    v_mul_f32 v20, {f32bits(-math.log2(math.e)):#x}, v29
    v_lshl_add_u32 v19, v26, 4, {sA}
    """)
    P.add(identcvt(0, ACC[0]))
    PK = 24
    Pp, Q = ACC[4], ACC[5]
    stamp(P, 'pre0')
    P.waitvm('db0_0'); stamp(P, 'db00'); P.e("s_waitcnt lgkmcnt(0)\ns_barrier")
    tiles = ((0, 0, ACC[0]), (1, 0, ACC[2]), (0, 1, ACC[1]), (1, 1, ACC[3]))
    for t, (m, fb, acc) in enumerate(tiles): P.add(db_tr(0, 0, m, fb, ABUF + 4 * t))
    for q in range(4): P.e(f"ds_read_b128 {vr(ACC[4]+4*q,4)}, v19 offset:{32*q}")
    P.add(identcvt(1, ACC[1]))
    stamp(P, 'p0')
    spine = []; ix = {}
    for s in range(28):
        for t, (m, fb, acc) in enumerate(tiles):
            ix[s, t] = len(spine)
            spine.append(f"{M32} {vr(acc,16)}, {ar(ABUF+16*(s&1)+4*t,4)}, {vr(XF+4*s,4)}, {vr(acc,16) if s else 0}")
            if s == 1 and t == 0:
                ix['B'] = len(spine)
                for ss in range(2):
                    spine.append(f"{M32} {vr(Pp,16)}, {vr(PK+4*ss,4)}, {ar(BT+4*ss,4)}, {vr(Pp,16) if ss else 0}")
                    spine.append(f"{M32} {vr(Q,16)}, {vr(PK+4*ss,4)}, {ar(BT+8+4*ss,4)}, {vr(Q,16) if ss else 0}")
            if (s == 3 and t == 0) or (s % 2 == 0 and t == 1 and 4 <= s < 26):
                pp = 2 if s == 3 else s // 2 + 1
                ix['id', pp] = len(spine); spine += ident(pp, IDT)
    n0 = len(spine)
    def setof(k): return ABUF + 16 * ((k >> 1) & 1) + 8 * (k & 1)
    for k in range(56):
        half, s = divmod(k, 28)
        accs = (ACC[4], ACC[5]) if half == 0 else (ACC[0], ACC[2])
        for m in range(2):
            ix['p', k, m] = len(spine)
            spine.append(f"{M32} {vr(accs[m],16)}, {ar(setof(k)+4*m,4)}, {vr(XF+4*s,4)}, {vr(accs[m],16) if s else 0}")
    n1 = len(spine); p1b = ix['p', 28, 0]
    HB, HD = 32, 12
    GA = [ACC[1], ACC[3], ACC[4], ACC[5]]
    D1, SA, XU, XR, DPF = 128, ACC[0], ACC[2], 240, 40
    Z1 = [z for z in range(28) if (z % 14) < 8]; Z2 = [z for z in range(28) if (z % 14) >= 8]
    zord = Z1 + Z2; NI1 = OPT.get('NI1', 16)
    def idft(n): return f"{M32} {vr(D1,16)}, {ar(ABUF+4*(n%8),4)}, {ar(4*zord[n],4)}, {vr(D1,16) if n else 0}"
    NP = OPT.get('NP', 6)
    spine += [None] * NP
    def gm(u, lam):
        th, dt = lam >> 1, lam & 1
        ix['g', u, lam] = len(spine)
        spine.append(f"{M32} {vr(GA[lam],16)}, {ar(8*u+4*dt,4)}, {vr(HB+8*(u%HD)+4*th,4)}, {vr(GA[lam],16) if u else 0}")
    NT = OPT.get('NT', 3)
    for u in range(28 - NT):
        if u == 21:
            for n in range(NI1): ix['i', n] = len(spine); spine.append(idft(n))
        for lam in range(4): gm(u, lam)
    for lam in (3, 2, 1, 0):
        for u in range(28 - NT, 28): gm(u, lam)
    n2 = len(spine)
    for n in range(NI1, 28): ix['i', n] = len(spine); spine.append(idft(n))
    last = len(spine) - 1
    gq = lambda u: min(ix['g', u, lam] for lam in range(4))
    ge = lambda u: max(ix['g', u, lam] for lam in range(4))
    trs = []; bar = {}
    def macro(start, nxt, reads, tag, pre=None):
        if pre: trs.append((start, start, pre))
        for x in reads: trs.append((start, max(start, nxt - 3), x))
        trs.append((nxt - 1, nxt - 1, WaitLG(tag)))
    B0 = {4: ['db0_1', 'db0_2'], 12: ['db0_3', 'db0_4'], 20: ['db0_5', 'db0_6']}
    for s in range(1, 28):
        reads = sum([db_tr(0, s, m, fb, ABUF + 16 * (s & 1) + 4 * t, f"r{s}") for t, (m, fb, acc) in enumerate(tiles)], [])
        pre = None; st = ix[s - 1, 0] - 1
        if s in B0: pre = [WaitVM(B0[s]), I('s_barrier')]; bar[s] = st
        macro(st, ix[s, 0], reads, f"r{s}", pre)
    for mc in range(28):
        reads = []
        for k in (2 * mc, 2 * mc + 1):
            half, s = divmod(k, 28)
            for m in range(2): reads += db_tr(1, s, m, half, setof(k) + 4 * m, f"p{mc}")
        st = (ix[27, 0] if mc == 0 else ix['p', 2 * mc - 2, 0]) - 1
        pre = None
        if mc == 0: pre = [WaitVM([f'db1_{c}' for c in range(4)]), I('s_barrier')]; bar['D'] = st
        if mc == 8: pre = [WaitVM([f'db1_{c}' for c in range(7)]), I('s_barrier')]; bar['E'] = st
        if mc == 23: pre = [I('s_barrier')]; bar['F'] = st
        macro(st, ix['p', 2 * mc, 0], reads, f"p{mc}", pre)
    idc = []
    for pp in range(2, 14):
        for x in identcvt(pp, IDT): idc.append((ix['id', pp] + 3, ix[2 * pp, 0] - (1 if pp == 2 else 2), x))
    stb = []
    for r in range(16): stb.append((0, ix['B'] - 2, f"v_mul_f32 v{DA+r}, v{ACC[4]+r}, v{DA+r}"))
    for z in range(8): stb.append((0, ix['B'] - 1, f"v_cvt_pk_bf16_f32 v{PK+z}, v{DA+2*z}, v{DA+2*z+1}"))
    lo, hi = ix['B'] + 5, ix['id', 2] - 1
    for r in range(8):
        stb.append((lo, hi, f"v_add_f32 v{Pp+r}, v{Pp+r}, v{Q+8+r}"))
        stb.append((lo, hi, f"v_sub_f32 v{Pp+8+r}, v{Pp+8+r}, v{Q+r}"))
    for sub in range(2):
        o = PK + 4 * sub
        for z in range(2):
            stb.append((lo, hi, f"v_cvt_pk_bf16_f32 v{o+z}, v{Pp+4*sub+2*z}, v{Pp+4*sub+2*z+1}"))
            stb.append((lo, hi, f"v_cvt_pk_bf16_f32 v{o+2+z}, v{Pp+8+4*sub+2*z}, v{Pp+8+4*sub+2*z+1}"))
    for x in [f"s_lshl_b32 {sE3}, {sJ}, 17", f"s_lshl_b32 {sE4}, {sN2}, 7", f"s_add_u32 {sE3}, {sE3}, {sE4}", f"s_add_u32 {sE3}, {sE3}, {YBUF}", f"v_xor_b32 v22, {sPOL}, v22"]: stb.append((lo, hi, x))
    for sub in range(2):
        o = PK + 4 * sub
        stb.append((lo, hi, f"v_permlane32_swap_b32 v{o}, v{o+2}"))
        stb.append((lo, hi, f"v_permlane32_swap_b32 v{o+1}, v{o+3}"))
    yst = [I(f"buffer_store_dwordx4 {vr(PK+4*sub,4)}, v22, {WS_}, {sE3} offen offset:{64*sub} sc1", 'Y') for sub in range(2)]
    YS = hi + 1
    IMG, TLD, IFL = 0, 49152, 106496
    VH, VW, VHF, VXO, VIF, VT0, VT1, VIM, VXD, VXR, VIW = 8, 6, 17, 22, 10, 23, 19, 28, 24, 25, 26
    m1 = lines(f"""
    s_lshl_b32 {sE1}, {sJ}, 10
    s_lshl_b32 {sA}, {sN2}, 4
    s_add_u32 {sE1}, {sE1}, {sA}
    s_add_u32 {sE1}, {sE1}, {YF}
    """)
    m0_ = [f"s_lshl_b32 {sF1}, {sN2}, 8", f"s_lshl_b32 {sA}, {sJ}, 4", f"s_add_u32 {sF1}, {sF1}, {sA}", f"s_add_u32 {sF1}, {sF1}, {HF[0]}"]
    m2 = lines(f"""
    s_and_b32 {sA}, {sW}, 1
    s_lshl_b32 {sB}, {sA}, 10
    v_add_u32 v{VW}, {sB}, {L16}
    v_xor_b32 v{VW+1}, 0x400, v{VW}
    s_lshr_b32 {sN2}, {sT}, 4
    s_lshl_b32 {sN2}, {sN2}, 13
    s_xor_b32 {sN2}, {sN2}, {sPOL}
    s_lshl_b32 {sE2}, {sW}, 14
    s_bfe_u32 {sD}, {sE}, 0x20002
    s_lshl_b32 {sD}, {sD}, 22
    s_add_u32 {sE2}, {sE2}, {sD}
    s_and_b32 {sD}, {sE}, 3
    s_lshl_b32 {sD}, {sD}, 19
    s_add_u32 {sE2}, {sE2}, {sD}
    s_add_u32 {sE2}, {sE2}, {sN2}
    s_add_u32 {sE2}, {sE2}, {W2F}
    s_lshr_b32 {sB}, {sW}, 1
    s_mul_i32 {sD}, {sB}, {14*16384}
    v_add_u32 v{VH}, {sD}, {L16}
    s_sub_u32 {sD}, {14*16384}, {sD}
    v_add_u32 v{VH+1}, {sD}, {L16}
    s_lshl_b32 {sE4}, {sB}, 4
    s_add_u32 {sE4}, {sE4}, {sA}
    s_lshl_b32 {sE4}, {sE4}, 10
    s_bfe_u32 {sD}, {sT}, 0x20002
    s_lshl_b32 {sD}, {sD}, 22
    s_add_u32 {sE4}, {sE4}, {sD}
    s_and_b32 {sD}, {sT}, 3
    s_lshl_b32 {sD}, {sD}, 19
    s_add_u32 {sE4}, {sE4}, {sD}
    s_add_u32 {sE4}, {sE4}, {sN2}
    s_add_u32 {sE4}, {sE4}, {HBUF}
    v_and_b32 v{VHF}, 7, v0
    v_min_u32 v{VHF}, 6, v{VHF}
    v_lshlrev_b32 v{VHF}, 5, v{VHF}
    v_bfe_u32 v27, v0, 3, 1
    v_lshl_add_u32 v{VHF}, v27, 8, v{VHF}
    s_lshl_b32 {sF2}, {sT}, 9
    s_lshl_b32 {sD}, {sB}, 4
    s_add_u32 {sF2}, {sF2}, {sD}
    s_add_u32 {sF2}, {sF2}, {HF[0]}
    s_mul_i32 {sF4}, {sW}, 14336
    s_and_b32 {sF3}, {sT}, 15
    s_lshl_b32 {sF3}, {sF3}, 17
    s_add_u32 {sF3}, {sF3}, {sN2}
    s_add_u32 {sF3}, {sF3}, {TBUF}
    s_lshr_b32 {sG1}, {sT}, 3
    s_lshl_b32 {sG1}, {sG1}, 9
    s_lshl_b32 {sD}, {sA}, 8
    s_add_u32 {sG1}, {sG1}, {sD}
    s_add_u32 {sG1}, {sG1}, {TF}
    s_lshl_b32 {sG2}, {sT}, 1
    s_add_u32 {sG2}, {sG2}, {sB}
    s_mul_i32 {sG2}, {sG2}, 896
    s_lshl_b32 {sD}, {sE}, 7
    s_add_u32 {sG2}, {sG2}, {sD}
    s_mul_i32 {sG3}, {sA}, {16*57344}
    s_add_u32 {sG3}, {sG3}, {sG2}
    s_lshl_b32 {sD}, {sA}, 6
    s_add_u32 {sG2}, {sG2}, {sD}
    v_lshrrev_b32 v27, 5, v0
    v_and_b32 v{VXO}, 31, v0
    v_lshlrev_b32 v{VXR}, 7, v{VXO}
    v_mul_u32_u24 v{VXO}, 57344, v{VXO}
    v_lshl_add_u32 v{VXO}, v27, 4, v{VXO}
    s_lshl_b32 {sD}, {sB}, 12
    v_add_u32 v{VXR}, {sD}, v{VXR}
    s_lshl_b32 {sD}, {sA}, 2
    v_xor_b32 v{VXD}, {sD}, v27
    v_bfe_u32 v{VT0}, v0, 1, 3
    v_xor_b32 v{VXD}, v{VXD}, v{VT0}
    v_lshl_add_u32 v{VXR}, v{VXD}, 4, v{VXR}
    v_lshrrev_b32 v{VXD}, 4, v0
    v_and_b32 v{VT0}, 7, v0
    v_xor_b32 v{VT0}, v{VT0}, v{VXD}
    v_lshrrev_b32 v{VXD}, 3, v0
    v_mul_u32_u24 v{VXD}, 57344, v{VXD}
    v_lshl_add_u32 v{VXD}, v{VT0}, 4, v{VXD}
    s_mul_i32 {sD}, {sA}, 28672
    s_add_u32 {sD}, {sD}, {IFL}
    v_add_u32 v{VIF}, {sD}, {L16}
    s_mul_i32 {sD}, {sB}, 14336
    v_add_u32 v{VIW}, {sD}, v{VIF}
    v_bfe_u32 v{VT1}, v0, 1, 4
    v_lshlrev_b32 v{VT0}, 7, v{VT1}
    v_bfe_u32 v{VT1}, v0, 2, 2
    v_xor_b32 v{VT1}, v{VT1}, v27
    v_lshl_add_u32 v{VT0}, v{VT1}, 5, v{VT0}
    v_and_b32 v{VT1}, 1, v0
    v_lshl_add_u32 v{VT0}, v{VT1}, 4, v{VT0}
    s_mul_i32 {sD}, {sB}, 28672
    s_add_u32 {sD}, {sD}, {TLD}
    v_add_u32 v{VT0}, {sD}, v{VT0}
    v_xor_b32 v{VT1}, 64, v{VT0}
    """)
    for lam in range(1, 4):
        m2 += [f"s_xor_b32 {sD}, {sW}, {lam}", f"s_mul_i32 {sD}, {sD}, 12288", f"s_add_u32 {sD}, {sD}, {IMG+(lam-1)*4096}", f"v_add_u32 v{VIM+lam-1}, {sD}, {L16}"]
    m2 += [f"s_mul_i32 {sD}, {sW}, 12288", f"s_add_u32 {sD}, {sD}, {IMG}", f"v_add_u32 v{VIM+3}, {sD}, {L16}"]
    YG = OPT.get('YG', YS + 26)
    MS = OPT.get('MS', 72)
    m2a = [x for x in m2[:17]]; m2b = [x.replace('v27', 'v31') for x in m2[17:]]
    m1b = lines(f"""
    s_lshr_b32 {sB}, {sN2}, 1
    s_lshl_b32 {sH0}, {sJ}, 14
    s_bfe_u32 {sA}, {sB}, 0x20002
    s_lshl_b32 {sA}, {sA}, 22
    s_add_u32 {sH0}, {sH0}, {sA}
    s_and_b32 {sA}, {sB}, 3
    s_lshl_b32 {sA}, {sA}, 19
    s_add_u32 {sH0}, {sH0}, {sA}
    s_and_b32 {sA}, {sN2}, 1
    s_mul_i32 {sA}, {sA}, {14*16384}
    s_add_u32 {sH0}, {sH0}, {sA}
    s_lshr_b32 {sA}, {sN2}, 5
    s_lshl_b32 {sA}, {sA}, 13
    s_xor_b32 {sA}, {sA}, {sPOL}
    s_add_u32 {sH0}, {sH0}, {sA}
    s_add_u32 {sH0}, {sH0}, {HBUF}
    s_add_u32 {sH1}, {sH0}, 4096
    v_and_b32 v18, 7, v0
    v_min_u32 v18, 6, v18
    v_lshlrev_b32 v18, 8, v18
    v_bfe_u32 v27, v0, 3, 2
    v_lshl_add_u32 v18, v27, 5, v18
    s_lshr_b32 {sE3}, {sW}, 1
    s_lshl_b32 {sE3}, {sE3}, 3
    s_and_b32 {sA}, {sW}, 1
    s_add_u32 {sE3}, {sE3}, {sA}
    s_lshl_b32 {sE3}, {sE3}, 4
    s_lshl_b32 {sA}, {sE}, 11
    s_add_u32 {sE3}, {sE3}, {sA}
    s_add_u32 {sE3}, {sE3}, {WF}
    """)
    misc = [(0, YS + 4, x) for x in m0_] + [(YS + 2, YS + 12, x) for x in m1] + [(YS + 13, YG, x) for x in m1b] + [(YG + 2, MS, x) for x in m2a]
    SP = OPT.get('SP', 3.0)
    vm = []; cur = [0.0]
    def put(groups, lo=0, step=None):
        for grp in groups:
            g = max(cur[0], lo); vm.append((int(g), int(g) + 1, grp)); cur[0] = g + (SP if step is None else step)
    wld = f"buffer_load_dword v27, v18, {WS_}, {sE3} offen sc1"
    ZG = OPT.get('ZG', YS + 6)
    fixed = [(YS, YS, yst), (ZG, ZG, poll_check('z', [zld], [17]) + flag_set(WS_, sF3, 'wj', ONE, ZERO)), (YG, YG + 1, flag_set(WS_, sE1, 'Y', ONE, ZERO))]
    put(sum([db_dma(0, c) for c in range(NDB, 7)], []) + db_dma(1, 0) + db_dma(1, 1))
    put(db_dma(1, 2) + db_dma(1, 3), bar[4] + 1)
    WG_ = OPT.get('WG', 70)
    fixed.append((WG_, WG_, wld))
    put(db_dma(1, 4) + db_dma(1, 5), bar[12] + 1)
    ofs = []
    for i in range(7): ofs += [f"s_lshl_b32 {ROT[i]}, {ROT[i]}, 9", f"s_add_u32 {ROT[i]}, {ROT[i]}, {sE2}"]
    misc += [(MS + 1, WG_ + 16, x) for x in ofs]
    put([poll_check('w', [wld], [27]) + ["v_and_b32 v18, 15, v0", "v_lshlrev_b32 v18, 4, v18"]], WG_ + 18, step=1)
    def w2load(fb):
        o = []
        for i in range(7):
            for dt in range(2):
                pre = [I(f"v_add_u32 v{VW}, 0x1000, v{VW}"), I(f"v_add_u32 v{VW+1}, 0x1000, v{VW+1}")] if (fb, i, dt) == (2, 0, 0) else []
                o.append(pre + [I(f"buffer_load_dwordx4 {ar(8*(7*fb+i)+4*dt,4)}, v{VW+dt}, {WS_}, {ROT[i]} offen offset:{2048*(fb&1)} sc1", 'w2')])
        return o
    hfl = f"buffer_load_dword v27, v{VHF}, {WS_}, {sF2} offen sc1"
    E = OPT.get('E', (22, 56, 88, 120)); E = [n0 + x for x in E]
    VH2 = 11
    def hl(u):
        fb, i = divmod(u, 7); b = HB + 8 * (u % HD)
        return [f"buffer_load_dwordx4 {vr(b+4*th,4)}, v{(VH2 if fb >= 2 else VH)+th}, {WS_}, {DBO[i]} offen offset:{2048*(fb&1)} sc1" for th in range(2)]
    FD = OPT.get('FD', (18, 18, 18, 18)); PW = OPT.get('PW', (34, 34, 34, 34)); PD = OPT.get('PD', (16, 16, 16, 14))
    CH = [E[fb] + FD[fb] + PW[fb] + PD[fb] for fb in range(4)]
    CH = [min(CH[fb], gq(7 * fb) - 4) for fb in range(4)]
    for fb in range(4):
        fixed.append((E[fb] + FD[fb], E[fb] + FD[fb], flag_set(WS_, sF1, f'h{fb}', ONE, ZERO) + [I(f"s_add_u32 {sF1}, {sF1}, 0x4000")]))
        fixed.append((CH[fb] - PD[fb], CH[fb] - PD[fb], hfl))
        fixed.append((CH[fb], CH[fb], poll_check(f'h{fb}', [hfl], [27]) + [I(f"s_add_u32 {sF2}, {sF2}, 0x4000")]))
        assert fb == 0 or CH[fb] - PD[fb] > CH[fb - 1]
    CK = 0; chk = []
    SPW = OPT.get('SPW', 2.3); SP2 = OPT.get('SP2', 1.3)
    wall = w2load(0) + w2load(1) + w2load(2) + w2load(3)
    k = 0
    while cur[0] < bar[20] + 1: put([wall[k]]); k += 1
    put(db_dma(1, 6))
    g6 = int(cur[0])
    misc += [(WG_ + 17, g6 + 10, x) for x in m2b]
    ofs = [f"s_lshr_b32 {sD}, {sE2}, 1", f"s_sub_u32 {sE4}, {sE4}, {sD}"]
    for i in range(7): ofs += [f"s_lshr_b32 {DBO[i]}, {ROT[i]}, 1", f"s_add_u32 {DBO[i]}, {DBO[i]}, {sE4}"]
    misc += [(g6 + 11, g6 + 30, x) for x in ofs]
    assert g6 + 30 < CH[0] - PD[0]
    misc += [(n1 + 1, n1 + 2, f"v_add_u32 v{VH2+th}, 0x1000, v{VH+th}") for th in range(2)]
    xd = [[I(f"s_add_u32 {sC}, {sG3}, {8*57344*u}"), I(f"s_lshl_b32 {sD}, {sW}, 11"), I(f"s_add_u32 m0, {sD}, {IMG+1024*u}")] + ([I(f"v_xor_b32 v{VXD}, 64, v{VXD}")] if u else []) +
          [I(f"buffer_load_dwordx4 v{VXD}, {X_}, {sC} offen lds", 'xr')] for u in range(2)]
    xd += [[f"s_mov_b32 {sC}, {DP}", f"buffer_load_dwordx4 {vr(DPF,4)}, {L16}, {TAB_}, {sC} offen"], [f"buffer_load_dwordx4 {vr(DPF+4,4)}, {L16}, {TAB_}, {sC} offen offset:1024"]]
    tfl = f"buffer_load_dword v5, v18, {WS_}, {sG1} offen sc1"
    TC = [gq(x) for x in OPT.get('TC', (15, 23))]; TPD = OPT.get('TPD', 14)
    for x in TC: fixed.append((x - TPD, x - TPD, tfl))
    pend = []
    for kk in range(k, 56):
        u = kk >> 1
        pend.append((n0 if u >= 25 else 0, gq(u) - 41, wall[kk], f'w{u}'))
    for u in range(28):
        fb = u // 7
        free = ge(u - HD) if u >= HD else ix['p', 28 + 2 * u + 1, 1]
        for x in hl(u): pend.append((max(free, CH[fb] + 1, n1 + 3 if fb >= 2 else 0), gq(u) - 40, I(x), f'h{u}'))
    pend.append((n1 + 4, gq(12), [I('s_barrier')] + xd[0], 'x'))
    pend.append((n1 + 4, gq(12) + 1, xd[1], 'x'))
    fixed.append((ge(25), ge(25), xd[2] + xd[3]))
    for part, (u0, u1) in enumerate(((0, 8), (8, 14))):
        dl = (ix['i', 0] if part == 0 else n2) - 40
        pend.append((TC[part], dl, poll_check(f't{part}', [tfl], [5]) + [I(f"s_add_u32 {sG1}, {sG1}, {TF2-TF}")], f't{part}'))
        for u in range(u0, u1): pend.append((TC[part], dl + 0.5, [I(f"s_add_u32 {sC}, {sF4}, {u*1024}"), I(f"s_and_b32 {sD}, {sC}, 0xe000"), I(f"s_add_u32 {sC}, {sC}, {sD}"), I(f"s_add_u32 {sC}, {sC}, {sF3}")] + dma(WS_, L16, sC, (sF4, TLD + u * 1024), 0, f'Tl{part}', 'sc1'), f'T{part}'))
    marks = {}
    while pend:
        av = [p for p in pend if p[0] <= cur[0]]
        if not av:
            cur[0] = min(p[0] for p in pend); continue
        p = min(av, key=lambda q: q[1]); pend.remove(p)
        marks[p[3]] = int(cur[0])
        put([p[2]], 0, OPT.get('SPH', 0.5) if p[3][0] == 'h' and p[1] + 40 - cur[0] < 12 else (SPW if cur[0] < n1 else SP2))
    assert marks['t0'] < TC[1] - TPD
    print("load gaps", {x: marks[x] for x in ('h0', 'h6', 'h7', 'h13', 'h14', 'h20', 'h21', 'h27', 'w20', 'w27', 't0', 'T0', 't1', 'T1')}, "checks", CH, "steps", [gq(7 * fb) for fb in range(4)], "idft", ix['i', 0], file=sys.stderr)
    for u in range(28):
        assert marks[f'h{u}'] + 1 < gq(u), ('h load after its check', u, marks[f'h{u}'], gq(u))
        assert marks.get(f'w{u}', 0) + 1 < gq(u), ('w2 load after use', u)
    epi = []
    for x in G.epilogue(ACC[0], ACC[2], 0): epi.append((n0 + 1, E[0], x))
    for x in G.epilogue(ACC[1], ACC[3], 1): epi.append((n0 + 1, E[1], x))
    for x in G.epilogue(ACC[4], ACC[5], 2): epi.append((p1b + 2, E[2], x))
    for x in G.epilogue(ACC[0], ACC[2], 3): epi.append((n1, E[3], x))
    assert E[0] < p1b - 1 and E[1] < n1 - 1 and E[2] < n1 - 1
    vm = sorted(vm + fixed, key=lambda x: x[0])
    gen = lines(f"""
    v_and_b32 v13, 31, v0
    s_lshl_b32 {sA}, {sE}, 6
    s_and_b32 {sB}, {sW}, 1
    s_lshl_b32 {sB}, {sB}, 5
    s_add_u32 {sA}, {sA}, {sB}
    v_add_u32 v13, {sA}, v13
    v_cvt_f32_u32 v13, v13
    v_mul_f32 v13, {f32bits(1/448):#x}, v13
    v_lshrrev_b32 v14, 5, v0
    s_lshr_b32 {sA}, {sW}, 1
    v_and_b32 v4, {sA}, v14
    v_cvt_f32_u32 v4, v4
    v_fma_f32 v4, v4, -0.5, 1.0
    s_mul_i32 {sA}, {sA}, 112
    s_add_u32 {sA}, {sA}, 1
    v_lshl_add_u32 v14, v14, 2, {sA}
    v_cvt_f32_u32 v14, v14
    v_mul_f32 v14, v14, v13
    """)
    for zl in range(14):
        t = 240 + 8 * (zl & 1)
        gen += [f"v_fmamk_f32 v{t+4+r}, v13, {f32bits(float(8*zl+r)):#x}, v14" for r in range(4)]
        gen += [f"v_cos_f32 v{t+r}, v{t+4+r}" for r in range(4)] + [f"v_sin_f32 v{t+4+r}, v{t+4+r}" for r in range(4)]
        if zl == 13: gen += [f"v_mul_f32 v{t+3}, v4, v{t+3}"]
        gen += [f"v_cvt_pk_bf16_f32 v{t}, v{t}, v{t+1}", f"v_cvt_pk_bf16_f32 v{t+1}, v{t+2}, v{t+3}",
                f"v_cvt_pk_bf16_f32 v{t+2}, -v{t+4}, -v{t+5}", f"v_cvt_pk_bf16_f32 v{t+3}, -v{t+6}, -v{t+7}",
                I(f"ds_write_b128 v{VIW}, {vr(t,4)} offset:{1024*zl}", 'ifw')]
    GE = n1 + OPT.get('GE', 70)
    gens = [(bar['F'] + 1, GE, x) for x in gen]
    rd_ = [(GE + 1, GE + 1, [WaitLG('ifw'), WaitVM('xr'), I('s_barrier')])]
    for qq in range(2): rd_.append((GE + 1, GE + 4, ([f"v_xor_b32 v{VXR}, 32, v{VXR}"] if qq else []) + [f"ds_read_b128 {vr(XR+4*qq,4)}, v{VXR}"]))
    for z in zord: rd_.append((max(GE + 1, ge(z >> 1)), GE + 14, I(f"ds_read_b128 {ar(4*z,4)}, v{VIF} offset:{1024*z}", 'ifr')))
    tb0 = ix['i', 0] - OPT.get('TB0', 6); tb_ = n2 - 4 * NT - OPT.get('TB1', -6)
    assert GE + 14 <= tb0 and marks['T0'] + 1 < tb0 and marks['T1'] + 1 < tb_
    for n in range(28):
        if n == 0: rd_.append((tb0, tb0, [WaitVM('Tl0'), WaitLG('ifr'), I('s_barrier')]))
        if n == 16: rd_.append((tb_, tb_, [WaitVM('Tl1'), I('s_barrier')]))
        z = zord[n]; lo = max(tb0 if n < 16 else tb_, ix['i', n - 8] if n >= 8 else 0)
        rd_.append((lo, max(lo, ix['i', n] - 4), f"ds_read_b128 {ar(ABUF+4*(n%8),4)}, v{VT1 if z & 1 else VT0} offset:{2048*(z>>1)}"))
    xs = []
    for qq in range(2):
        for z in range(2): xs.append((GE + 8, n2 - 2, f"v_permlane32_swap_b32 v{XR+4*qq+z}, v{XR+4*qq+2+z}"))
    for z in range(8):
        xs.append((GE + 8, n2 - 2, f"v_lshlrev_b32 v{XU+2*z}, 16, v{XR+z}"))
        xs.append((GE + 8, n2 - 2, f"v_and_b32 v{XU+2*z+1}, {sMASK}, v{XR+z}"))
    xs.append((GE + 8, n2 - 2, f"s_mov_b32 {sE1}, {f32bits(-math.log2(math.e)):#x}"))
    red = []
    for lam in range(1, 4):
        for q in range(4): red.append(I(f"ds_write_b128 v{VIM+lam-1}, {vr(GA[lam]+4*q,4)} offset:{1024*q}", 'pw'))
    red.append([WaitLG('pw'), I('s_barrier')])
    for lam in range(1, 4):
        for q in range(4): red.append(f"ds_read_b128 {vr(GA[lam]+4*q,4)}, v{VIM+3} offset:{(lam-1)*4096+1024*q}")
    Gq = GA[0]
    for quad in range(4):
        r = [4 * quad + k for k in range(4)]
        for lam in range(1, 4): red += [f"v_add_f32 v{Gq+k}, v{Gq+k}, v{GA[lam]+k}" for k in r]
        T = GA[1]
        red += [f"v_mul_f32 v{T+k}, {sE1}, v{Gq+k}" for k in r] + [f"v_exp_f32 v{T+k}, v{T+k}" for k in r] + [f"v_add_f32 v{T+k}, 1.0, v{T+k}" for k in r]
        red += [f"v_rcp_f32 v{T+k}, v{T+k}" for k in r] + [f"v_mul_f32 v{Gq+k}, v{Gq+k}, v{T+k}" for k in r]
    wr = [(ix['g', 27, lam] + 2, min(last, ix['g', 27, lam] + 8), red[4 * (lam - 1) + q]) for lam in (3, 2, 1) for q in range(4)]
    red = red[12:]
    nin = min(len(red), OPT.get('RN', 5) * (last - n2 - 2))
    reds = wr + [(max(n2 + 2, tb_ + 1), last, x) for x in red[:nin]]
    stm = sorted([(x, x, stamp_i(n)) for n, x in dict(p1=n0 - 1, p1b=p1b - 1, g2=n1 - 1, idft=n2 - 1, s8=ix[8, 0], s16=ix[16, 0], s24=ix[24, 0], k14=ix['p', 14, 0], k42=ix['p', 42, 0], u7=gq(7), u14=gq(14), u21=gq(21), **{n: int(n[1:]) for n in SEL if n[0] == 'G'}).items() if stamp_i(n)], key=lambda x: x[0])
    for n in SEL:
        if n[0] == 'A' and STAMPS:
            k = int(n[1:]); spine[k] = stamp_i(n) + [spine[k]] + stamp_i('B' + n[1:])
    P.add(weave(spine, [trs, idc, vm, stb, epi, misc, gens, rd_, xs, reds, chk, stm], report=rep))
    print("n0", n0, "p1b", p1b, "n1", n1, "n2", n2, "bars", bar, file=sys.stderr)
    K = 32
    for z in range(8): P.e(f"v_cvt_pk_bf16_f32 v{K+z}, v{D1+2*z}, v{D1+2*z+1}")
    for ss in range(2): P.e(f"{M32} {vr(SA,16)}, {vr(K+4*ss,4)}, {vr(DPF+4*ss,4)}, {vr(SA,16) if ss else 0}")
    P.add(red[nin:])
    for r in range(16): P.e(f"v_fma_f32 v{Gq+r}, v{SA+r}, v{Gq+r}, v{XU+r}")
    for z in range(8): P.e(f"v_cvt_pk_bf16_f32 v{K+z}, v{Gq+2*z}, v{Gq+2*z+1}")
    for qq in range(2):
        for z in range(2): P.e(f"v_permlane32_swap_b32 v{K+4*qq+z}, v{K+4*qq+2+z}")
    stamp(P, 'tail')
    P.e(f"buffer_store_dwordx4 {vr(K,4)}, v{VXO}, {OUT_}, {sG2} offen")
    P.e(f"buffer_store_dwordx4 {vr(K+4,4)}, v{VXO}, {OUT_}, {sG2} offen offset:32")
    stamp_out(P, len(SEL) - 1, sBID)

def build():
    rep = []
    P = Prog(); entry(P); main(P, rep)
    P.raw("L_end:"); P.e("s_endpgm")
    aux(P, rep)
    body = P.finalize() + "".join(slow_paths) + "L_code_end:\n"
    print(P.stats, file=sys.stderr)
    for k, r in enumerate(rep): print(''.join('%x' % min(x, 15) for x in r), sum(max(32 if k == 0 else 16, 8 + 4 * x) for x in r[1:]), file=sys.stderr)
    lbl = NAME + "_kernel"
    s = f"; @launch grid=({NAUX+NMAIN},1,1) block=(256,1,1) lds=163840\n"
    s += '.amdgcn_target "amdgcn-amd-amdhsa--gfx950"\n.text\n' + G.kernel_text(lbl, body)
    s += '.section .rodata,"a"\n' + G.descriptor(lbl) + tables()
    return s
if __name__ == "__main__":
    STAMPS = 'stamps' in sys.argv
    for a in sys.argv:
        if a.startswith('exfil='): EXFIL = a[6:]; STAMPS = True
        if a.startswith('sel='): SEL[:] = ['start'] + a[4:].split(',') + ['end']
        if a.startswith('sela='): SELA[:] = ['start'] + a[5:].split(',') + ['end']
        if a.startswith('opt:'):
            k, v = a[4:].split('='); OPT[k] = eval(v)
    txt = build()
    open(sys.argv[1], "w").write(txt)
```
